```python
import torch

def _softmax(x, axis=-1):
    return torch.softmax(x, dim=axis)
def _gelu(x):
    return torch.nn.functional.gelu(x, approximate="tanh")
def _silu(x):
    return torch.nn.functional.silu(x)
def _sigmoid(x):
    return torch.sigmoid(x)
def _layernorm(x, axis=-1, eps=1e-5):
    m = x.mean(dim=axis, keepdim=True)
    v = x.var(dim=axis, keepdim=True, unbiased=False)
    return (x - m) / torch.sqrt(v + eps)
def _scatter_add(tgt, idx, src, axis=0):
    return tgt.clone().index_add_(axis, idx, src)
def _segment_sum(src, seg, n):
    out = torch.zeros((n,) + src.shape[1:], dtype=src.dtype)
    return out.index_add_(0, seg, src)
def _pad(x, pw):
    flat = tuple(v for pair in reversed(pw) for v in pair)
    return torch.nn.functional.pad(x, flat)

kernel_name = 'interleave_layers__linear_attn_block__mixer_s_mlp__prompt'

def setup_inputs():

    _w = (lambda a: (lambda t: t.to(torch.bfloat16) if t.is_floating_point() else t)(torch.as_tensor(a)))
    def _A_setup():
        B, S, D = 1, 2048, 512
        return {
            "x": _w((lambda *s: torch.randn(*s, dtype=torch.bfloat16) * 0.05)(B, S, D)),
            "wqkv": _w((lambda *s: torch.randn(*s, dtype=torch.bfloat16) * 0.1)(D, 3 * D)),
            "wo": _w((lambda *s: torch.randn(*s, dtype=torch.bfloat16) * 0.1)(D, D)),
        }
    _A_in = _A_setup()

    def _B_setup():
        B, S, D, F = 1, 2048, 512, 1792
        return {
            "x":  _w((lambda *s: torch.randn(*s, dtype=torch.bfloat16) * 0.05)(B, S, D)),
            "w1": _w((lambda *s: torch.randn(*s, dtype=torch.bfloat16) * 3.2)(D, D) * (D ** -0.5)),
            "w2": _w((lambda *s: torch.randn(*s, dtype=torch.bfloat16) * 3.2)(D, D) * (D ** -0.5)),
            "w3": _w((lambda *s: torch.randn(*s, dtype=torch.bfloat16) * 3.2)(D, F) * (D ** -0.5)),
            "w4": _w((lambda *s: torch.randn(*s, dtype=torch.bfloat16) * 3.2)(F, D) * (F ** -0.5)),
        }
    _B_in = _B_setup()

    return {
        "A_x": _A_in["x"],
        "A_wqkv": _A_in["wqkv"],
        "A_wo": _A_in["wo"],
        "B_x": _B_in["x"],
        "B_w1": _B_in["w1"],
        "B_w2": _B_in["w2"],
        "B_w3": _B_in["w3"],
        "B_w4": _B_in["w4"],
    }

def reference(A_x, A_wqkv, A_wo, B_x, B_w1, B_w2, B_w3, B_w4):
    def _A_ref(x, wqkv, wo):
        B, S, D = x.shape
        H = 32; Dh = D // H
        qkv = (lambda x, *d: x.permute(*d))((x @ wqkv).reshape(B, S, 3, H, Dh), 2, 0, 3, 1, 4)
        q, k, v = qkv[0], qkv[1], qkv[2]
        phi = lambda t: torch.where(t > 0, t + 1, torch.exp(t)) + 1e-6
        pq, pk = phi(q), phi(k)
        kv = torch.einsum("bhsd,bhse->bhde", pk, v)
        z = torch.einsum("bhsd->bhd", pk)
        num = torch.einsum("bhqd,bhde->bhqe", pq, kv)
        den = torch.einsum("bhqd,bhd->bhq", pq, z)[..., None] + 1e-6
        o = num / den
        return (lambda x, *d: x.permute(*d))(o, 0, 2, 1, 3).reshape(B, S, D) @ wo

    def _B_ref(x, w1, w2, w3, w4):
        B, S, D = x.shape
        h = _gelu(_layernorm(x, axis=-1) @ w1)
        c = D // 4
        g0 = _pad(h[:, :, 0*c:1*c], ((0, 0), (1, 0), (0, 0)))[:, :S, :]
        g1 = _pad(h[:, :, 1*c:2*c], ((0, 0), (0, 1), (0, 0)))[:, 1:, :]
        g2 = _pad(h[:, :, 2*c:3*c], ((0, 0), (2, 0), (0, 0)))[:, :S, :]
        g3 = _pad(h[:, :, 3*c:   ], ((0, 0), (0, 2), (0, 0)))[:, 2:, :]
        hs = torch.concatenate([g0, g1, g2, g3], axis=-1) @ w2
        x1 = x + hs
        h2 = _gelu(_layernorm(x1, axis=-1) @ w3) @ w4
        return x1 + h2

    x = A_x
    x = x + _A_ref(_layernorm(x, axis=-1), A_wqkv, A_wo)
    x = x + _B_ref(_layernorm(x, axis=-1), B_w1, B_w2, B_w3, B_w4)
    x = x + _A_ref(_layernorm(x, axis=-1), A_wqkv, A_wo)
    x = x + _B_ref(_layernorm(x, axis=-1), B_w1, B_w2, B_w3, B_w4)
    return x
```

```python
import re

TRANS = ("v_exp_f32", "v_rcp_f32", "v_rsq_f32", "v_log_f32", "v_sqrt_f32", "v_sin_f32", "v_cos_f32", "v_rcp_iflag_f32")

def regs_of(op):
    op = op.strip()
    if op.startswith("-"): op = op[1:]
    if op.startswith("abs(") or op.startswith("|"):
        op = op.strip("|").replace("abs(", "").replace(")", "")
    m = re.fullmatch(r"([vas])\[(\d+):(\d+)\]", op)
    if m: return {(m.group(1), i) for i in range(int(m.group(2)), int(m.group(3)) + 1)}
    m = re.fullmatch(r"([vas])(\d+)", op)
    if m: return {(m.group(1), int(m.group(2)))}
    if op in ("vcc", "vcc_lo", "vcc_hi"): return {"vcc"}
    if op in ("exec", "exec_lo", "exec_hi"): return {"exec"}
    if op == "m0": return {"m0"}
    return set()

class Ins:
    __slots__ = ("text", "mn", "cls", "w", "r", "dpp", "passes", "cexact", "crange", "drange", "abregs", "label", "target", "wide_store", "lds_dma")
    def __init__(self, text):
        self.text = text
        self.label = None; self.target = None
        self.w = set(); self.r = set(); self.dpp = False; self.passes = 0
        self.crange = set(); self.drange = set(); self.abregs = set(); self.wide_store = False; self.lds_dma = False
        t = text.split(";")[0].strip()
        if t.endswith(":"):
            self.label = t[:-1]; self.cls = "label"; self.mn = ""; return
        if t.startswith(".") or t == "":
            self.cls = "dir"; self.mn = ""; return
        parts = t.split(None, 1)
        mn = parts[0]; self.mn = mn
        rest = parts[1] if len(parts) > 1 else ""
        ops = [o.strip() for o in rest.split(",")] if rest else []
        mods = ""
        if ops:
            last = ops[-1].split(None, 1)
            ops[-1] = last[0]
            mods = last[1] if len(last) > 1 else ""
        allr = [regs_of(o) for o in ops]
        if mn.startswith("v_mfma"):
            self.cls = "mfma"
            self.passes = 8 if "32x32" in mn else 4
            self.w = set(allr[0]); self.drange = set(allr[0])
            self.abregs = allr[1] | allr[2]
            self.crange = set(allr[3])
            self.r = self.abregs | self.crange
        elif mn.startswith("v_"):
            self.cls = "trans" if mn.replace("_e32", "").replace("_e64", "") in TRANS else "valu"
            if "row_" in mods or "quad_perm" in mods or "_dpp" in mn or "row_" in rest or "quad_perm" in rest: self.dpp = True
            if mn.startswith("v_cmp"):
                self.w = set(allr[0]);
                for x in allr[1:]: self.r |= x
            elif mn.startswith("v_permlane"):
                self.w = allr[0] | allr[1]; self.r = allr[0] | allr[1]; self.dpp = True
            elif mn.startswith("v_add_co") or mn.startswith("v_addc_co") or mn.startswith("v_sub_co") or mn.startswith("v_subb_co"):
                self.w = allr[0] | allr[1]
                for x in allr[2:]: self.r |= x
            elif mn.startswith("v_readfirstlane") or mn.startswith("v_readlane"):
                self.w = set(allr[0])
                for x in allr[1:]: self.r |= x
            else:
                self.w = set(allr[0])
                for x in allr[1:]: self.r |= x
                if mn.startswith("v_fmac") or mn.startswith("v_mac") or mn.startswith("v_dot2c") or mn.startswith("v_writelane") or mn.startswith("v_pk_fmac"):
                    self.r |= allr[0]
                if mn.startswith("v_cndmask") and len(ops) == 3: self.r |= {"vcc"}
                if "_dpp" in mn or self.dpp: self.r |= allr[0]
        elif mn.startswith("buffer_") or mn.startswith("global_"):
            self.cls = "vmem"
            alltok = (rest + " ").replace(",", " ").split()
            if "lds" in alltok:
                self.lds_dma = True
                for x in allr: self.r |= x
                self.r |= {"m0"}
            elif "load" in mn or ("atomic" in mn and "sc0" in alltok):
                self.w = set(allr[0])
                for x in allr[1:]: self.r |= x
                if "atomic" in mn: self.r |= allr[0]
            elif mn in ("buffer_wbl2", "buffer_inv"):
                pass
            else:
                for x in allr: self.r |= x
                if "x4" in mn or "x3" in mn: self.wide_store = True; self.drange = set(allr[0])
        elif mn.startswith("ds_"):
            self.cls = "ds"
            if mn.startswith("ds_read") or mn.startswith("ds_bpermute") or mn.startswith("ds_swizzle") or mn.startswith("ds_permute"):
                self.w = set(allr[0])
                for x in allr[1:]: self.r |= x
            else:
                for x in allr: self.r |= x
        elif mn.startswith("s_"):
            self.cls = "salu"
            if mn.startswith("s_cbranch") or mn == "s_branch":
                self.target = ops[0] if ops else None
            elif mn.startswith("s_cmp") or mn in ("s_waitcnt", "s_nop", "s_barrier", "s_endpgm", "s_sleep", "s_setprio"):
                for x in allr: self.r |= x
            else:
                if allr: self.w = set(allr[0])
                for x in allr[1:]: self.r |= x
                if "saveexec" in mn: self.w |= {"exec"}; self.r |= {"exec"}
        else:
            raise ValueError("unknown instruction: " + text)
    def states(self):
        if self.cls in ("label", "dir"): return 0
        if self.mn == "s_nop": return int(self.text.split()[1]) + 1
        return 1

def isv(x): return isinstance(x, tuple) and x[0] in ("v", "a")
def iss(x): return (isinstance(x, tuple) and x[0] == "s") or x == "vcc"

def need(p, c):
    n = 0
    pv = {x for x in p.w if isv(x)}
    ps = {x for x in p.w if iss(x)}
    pvalu = p.cls in ("valu", "trans")
    if pvalu:
        if c.cls == "mfma" and pv & c.r: n = max(n, 2)
        if c.cls in ("valu", "trans"):
            if c.dpp and pv & c.r: n = max(n, 2)
            if (c.mn.startswith("v_readfirstlane") or c.mn.startswith("v_readlane")) and pv & c.r: n = max(n, 1)
            if ps & c.r:
                n = max(n, 4 if (c.mn.startswith("v_readlane") or c.mn.startswith("v_writelane")) else 2)
            if p.cls == "trans" and c.cls != "trans" and pv & c.r: n = max(n, 1)
        if c.cls == "vmem" and ps & c.r: n = max(n, 5)
        if "exec" in p.w and c.cls in ("mfma",): n = max(n, 4)
    if p.cls == "mfma":
        long = 8 if p.passes == 4 else 12
        if c.cls in ("valu", "trans") and p.drange & (c.r | c.w): n = max(n, long)
        if c.cls in ("vmem", "ds") and p.drange & (c.r | c.w): n = max(n, long)
        if c.cls == "mfma":
            if p.drange & c.abregs: n = max(n, long)
            if p.drange & c.crange and not (p.drange == c.crange and p.passes == c.passes):
                n = max(n, 6 if p.passes == 4 else 10)
            if p.drange & c.drange and not (p.drange == c.drange and c.crange == c.drange):
                if not (p.drange == c.crange): n = max(n, 6 if p.passes == 4 else 10)
        if c.cls in ("valu", "trans") and p.crange & c.w: n = max(n, 3 if p.passes == 4 else 7)
    if p.cls == "salu" and "m0" in p.w and c.lds_dma: n = max(n, 1)
    if p.cls == "vmem" and p.wide_store:
        if c.cls in ("valu", "trans") and p.drange & c.w: n = max(n, 2)
        elif c.cls in ("vmem", "ds", "mfma") and p.drange & c.w: n = max(n, 1)
    return n

HIST = 14

def pad_hazards(lines):
    ins = [Ins(l) for l in lines]
    label_pos = {i.label: k for k, i in enumerate(ins) if i.label}
    out = []
    hist = []
    pending = {}
    head_hist_checks = []
    nnop = 0
    for k, c in enumerate(ins):
        if c.cls == "label":
            if c.label in pending:
                for h in pending.pop(c.label):
                    d = {id(x[0]): x for x in hist}
                    for x in h:
                        if id(x[0]) in d: d[id(x[0])][1] = min(d[id(x[0])][1], x[1])
                        else: hist.append([x[0], x[1]])
            out.append(c.text); continue
        if c.cls == "dir":
            out.append(c.text); continue
        req = 0
        for p, dist in hist:
            n = need(p, c)
            if n > dist: req = max(req, n - dist)
        if req > 0:
            r = req
            while r > 0:
                m = min(r, 16)
                out.append(f"  s_nop {m-1}"); nnop += 1
                r -= m
            for x in hist: x[1] += req
        out.append(c.text)
        st = c.states()
        for x in hist: x[1] += st
        hist = [x for x in hist if x[1] < HIST]
        if c.cls in ("valu", "trans", "mfma", "salu", "vmem"):
            hist.append([c, 0])
        if c.target is not None and c.target in label_pos:
            if label_pos[c.target] > k:
                pending.setdefault(c.target, []).append([[x[0], x[1]] for x in hist])
            else:
                dist_add = 0
                for q in range(label_pos[c.target], min(label_pos[c.target] + HIST, len(ins))):
                    ci = ins[q]
                    if ci.cls in ("label", "dir"): continue
                    for p, dist in hist:
                        n = need(p, ci)
                        if n > dist + dist_add:
                            raise RuntimeError(f"hazard across backward branch {c.text} -> {ci.text} (producer {p.text})")
                    dist_add += ci.states()
            if c.mn == "s_branch": hist = []
        if c.mn == "s_endpgm": hist = []
    return out, nnop

class K:
    def __init__(self):
        self.L = []
        self.vm = []
        self.lg = []
        self.cond = False
        self.nlab = 0
    def e(self, s): self.L.append("  " + s)
    def c(self, s): self.L.append("  ; " + s)
    def lab(self, name): self.L.append(name + ":")
    def newlab(self, p="L"):
        self.nlab += 1
        return f"{p}_{self.nlab}"
    def vmem(self, s, tag=None):
        self.e(s); self.vm.append((tag, self.cond))
    def ds(self, s, tag=None):
        self.e(s); self.lg.append(tag)
    def _vm_n(self, tag):
        idx = None
        for i, (t, _) in enumerate(self.vm):
            if t == tag: idx = i
        if idx is None: return None
        n = sum(1 for (t, cnd) in self.vm[idx + 1:] if not cnd)
        return idx, n
    def wait(self, vm=None, lg=None):
        parts = []
        if vm is not None:
            r = self._vm_n(vm)
            if r is not None:
                idx, n = r
                n = min(n, 63)
                parts.append(f"vmcnt({n})")
                self.vm = self.vm[idx + 1:]
        if lg is not None:
            idx = None
            for i, t in enumerate(self.lg):
                if t == lg: idx = i
            if idx is not None:
                n = min(len(self.lg) - idx - 1, 15)
                parts.append(f"lgkmcnt({n})")
                self.lg = self.lg[idx + 1:]
        if parts: self.e("s_waitcnt " + " ".join(parts))
    def wait_all(self, vm=True, lg=True):
        parts = []
        if vm: parts.append("vmcnt(0)"); self.vm = []
        if lg: parts.append("lgkmcnt(0)"); self.lg = []
        self.e("s_waitcnt " + " ".join(parts))
    def barrier(self): self.e("s_barrier")

def vr(base, n=1):
    return f"v{base}" if n == 1 else f"v[{base}:{base+n-1}]"
def ar(base, n=1):
    return f"a{base}" if n == 1 else f"a[{base}:{base+n-1}]"
def sr(base, n=1):
    return f"s{base}" if n == 1 else f"s[{base}:{base+n-1}]"
```

```python
FLG   = 0x000000
XCC   = 0x010000
ZERO_END = 0x020000
KV1   = 0x020000
KV2   = 0x2A0000
HALO  = 0x340000
SENT_END = 0x362000
WSH   = 0x400000
NPOS  = 216
CLB   = 0x1000000
CL_STRIDE = 0x200000
X0_OFF = 0x00000
LAYER_OFF = 0x10000
LAYER_SZ  = 0xD0000
O_OFF, XP_OFF, H_OFF, X1_OFF, PART_OFF, X2_OFF = 0x00000, 0x10000, 0x20000, 0x30000, 0x40000, 0xC0000
WS_BYTES = 268435456
P_KV, P_Q, P_WO, P_W1, P_W2, P_W3A, P_W3B, P_W4 = 0, 32, 48, 64, 80, 96, 128, 160
SENT = 0xFFFFFFFF
KNAME = "interleave_layers__linear_attn_block__mixer_s_mlp__prompt_kernel"
```

```python
from asmlib import *
from layout import *

LDS_BYTES = 114688
L_ATILE, L_H2A, L_STAT, L_STAT2 = 0, 81920, 110592, 111616
HSTRIDE = 1280

S_WS = "s[4:7]"; S_X = "s[12:15]"; S_OUT = "s[16:19]"
sC, sJ, sW, sMODE, sCL, sWPOS = "s20", "s21", "s22", "s23", "s24", "s25"
sT0, sT1, sT2, sT3, sT4, sT5 = "s26", "s27", "s28", "s29", "s30", "s31"
sCNT = "s32"; sFLG = "s33"; sWBASE = "s34"; sXCC = "s35"; sU = "s36"; sX8 = "s37"
sM1, sM2, sM3, sDIAG = "s[40:41]", "s[42:43]", "s[44:45]", "s[46:47]"
sHM = ["s[48:49]", "s[50:51]"]
sPM_T, sPM_P = "s[52:53]", "s[54:55]"
sSAVE = "s[56:57]"
sLOG2E, sEPS6, sINV512, sEPS5 = "s58", "s59", "s60", "s61"
sHALO_ST, sHALO_LD, sKV1, sKV2W, sKV2R = "s62", "s63", "s64", "s65", "s66"
vLANE, vL16, vL4 = 1, 2, 3
vTA = [4, 5, 6, 7]; vTH = [8, 9, 10, 11]; vST = [12, 13]; vSA = [14, 15, 16, 17]; vSB = [18, 19, 20, 21]
vHO = [22, 23]
vONES = 24
vID = 28
vC0, vC1 = 30, 31
X, XN, PQ = 32, 48, 64
ACC = 72
TMP = 200
vXC = 255; vONE = 254; vZERO = 253
aB = [0, 16]
aCQ, aCK, aCV, aC1, aC3 = 32, 36, 40, 44, 48
aF = 64; NSLOT = 48
SPIN_LIMIT = 400000

class Main:
    def __init__(self, stop=99, nlayers=2):
        self.k = K(); self.stop = int(stop); self.nlayers = int(nlayers)
        self.total_pos = NPOS * self.nlayers
        self.next_load = 0
    def wslot(self, P): return aF + 4 * (P % NSLOT)
    def is_null(self, P):
        mp = P % NPOS
        return P_W3B <= mp < P_W4 and (mp - P_W3B) % 2 == 1
    def wload_next(self):
        k = self.k; P = self.next_load
        if P >= self.total_pos: return
        self.next_load += 1
        mp = P % NPOS
        if mp % 4 == 0 and P > 0:
            if mp == 0: k.e(f"s_mov_b32 {sWPOS}, {sWBASE}")
            else: k.e(f"s_add_u32 {sWPOS}, {sWPOS}, 4096")
        ins = f"buffer_load_dwordx4 {ar(self.wslot(P), 4)}, v{vL16}, {S_WS}, {sWPOS} offen offset:{(mp % 4) * 1024}"
        if self.is_null(P):
            lab = k.newlab("WN")
            k.e(f"s_cmp_ge_u32 {sW}, 2"); k.e(f"s_cbranch_scc1 {lab}")
            k.cond = True; k.vmem(ins, ("W", P)); k.cond = False
            k.lab(lab)
        else:
            k.vmem(ins, ("W", P))
    def wuse(self, P):
        self.k.wait(vm=("W", P))
        return ar(self.wslot(P), 4)
    def wrefill(self, upto):
        while self.next_load < min(upto, self.total_pos): self.wload_next()
    def poll(self, mask, soff_sgpr):
        k = self.k; L = k.newlab("PL"); D = k.newlab("PD")
        k.e(f"s_mov_b64 exec, {mask}")
        k.e(f"s_mov_b32 {sCNT}, 0")
        k.lab(L)
        k.e(f"buffer_load_dword v{TMP}, v{vL4}, {S_WS}, {soff_sgpr} offen sc1")
        k.e("s_waitcnt vmcnt(0)")
        k.e(f"v_cmp_eq_u32 vcc, 0, v{TMP}")
        k.e(f"s_cbranch_vccz {D}")
        k.e(f"s_add_u32 {sCNT}, {sCNT}, 1")
        k.e(f"s_cmp_lt_u32 {sCNT}, {SPIN_LIMIT}")
        k.e(f"s_cbranch_scc1 {L}")
        k.lab(D)
        k.e("s_mov_b64 exec, -1")
        k.vm = []
    def flag_addr(self, phase):
        self.k.e(f"s_add_u32 {sT0}, {sFLG}, {phase * 128}")
    def signal(self, phase):
        k = self.k
        k.wait(vm="XS")
        k.e(f"s_lshl_b32 {sT1}, {sJ}, 4"); k.e(f"s_lshl_b32 {sT2}, {sW}, 2"); k.e(f"s_add_u32 {sT1}, {sT1}, {sT2}")
        k.e(f"s_add_u32 {sT1}, {sT1}, {sFLG}"); k.e(f"s_add_u32 {sT1}, {sT1}, {phase * 128}")
        k.e("s_mov_b64 exec, 1")
        self.xblock([f"buffer_store_dword v{vONE}, off, {S_WS}, {sT1}"], "FL")
        k.e("s_mov_b64 exec, -1")
    def xblock(self, stores, tag):
        k = self.k; slow = k.newlab("XS"); done = k.newlab("XD")
        k.e(f"s_cmp_eq_u32 {sMODE}, 0"); k.e(f"s_cbranch_scc1 {slow}")
        for s in stores: k.e(s)
        k.e(f"s_branch {done}")
        k.lab(slow)
        for s in stores: k.e(s + " sc1")
        k.lab(done)
        for s in stores: k.vm.append((tag, False))
    def load_atile(self, buf_off, hl=False):
        k = self.k
        k.e(f"s_lshl_b32 {sT0}, {sW}, 14")
        k.e(f"s_add_u32 {sT1}, {sCL}, {buf_off}"); k.e(f"s_add_u32 {sT1}, {sT1}, {sT0}")
        if not hl:
            k.e(f"s_mov_b32 m0, {sT0}")
            for i in range(16):
                if i % 4 == 0 and i > 0:
                    k.e(f"s_add_u32 {sT1}, {sT1}, 4096"); k.e("s_add_u32 m0, m0, 4096")
                k.vmem(f"buffer_load_dwordx4 v{vL16}, {S_WS}, {sT1} offen offset:{(i % 4) * 1024} lds", "AT")
        else:
            k.e(f"s_mul_i32 {sT2}, {sW}, {16 * HSTRIDE}"); k.e(f"s_add_u32 {sT2}, {sT2}, 32")
            for i in range(16):
                if i % 4 == 0 and i > 0: k.e(f"s_add_u32 {sT1}, {sT1}, 4096")
                k.e(f"s_add_u32 m0, {sT2}, {i * HSTRIDE - (i % 4) * 1024}")
                k.vmem(f"buffer_load_dwordx4 v{vL16}, {S_WS}, {sT1} offen offset:{(i % 4) * 1024} lds", "AT")
    def read_B(self, s, setid, addr, off_fn):
        k = self.k
        for t in range(4):
            vreg, off = off_fn(t, s)
            k.ds(f"ds_read_b128 {ar(aB[setid] + 4 * t, 4)}, v{vreg} offset:{off}", ("B", s))
    def kloop(self, nsteps, off_fn, body, pre=None):
        k = self.k
        self.read_B(0, 0, None, off_fn)
        for s in range(nsteps):
            if s + 1 < nsteps: self.read_B(s + 1, (s + 1) & 1, None, off_fn)
            k.wait(lg=("B", s))
            T = [ar(aB[s & 1] + 4 * t, 4) for t in range(4)]
            body(s, T)
    def mfma(self, d, a, b, c=None, k16=False):
        op = "v_mfma_f32_16x16x16_bf16" if k16 else "v_mfma_f32_16x16x32_bf16"
        D = d if isinstance(d, str) else vr(d, 4)
        C = D if c is None else (c if isinstance(c, str) else vr(c, 4))
        self.k.e(f"{op} {D}, {a}, {b}, {C}")
    def pack_store_T(self, src, buf_off, final=False):
        k = self.k
        P = TMP
        for t in range(4):
            k.e(f"v_cvt_pk_bf16_f32 v{P + 2*t}, v{src + 4*t}, v{src + 4*t + 1}")
            k.e(f"v_cvt_pk_bf16_f32 v{P + 2*t + 1}, v{src + 4*t + 2}, v{src + 4*t + 3}")
        for p in range(2):
            k.e(f"v_permlane16_swap_b32 v{P + 4*p}, v{P + 4*p + 2}")
            k.e(f"v_permlane16_swap_b32 v{P + 4*p + 1}, v{P + 4*p + 3}")
        if buf_off is None: return
        k.e(f"s_lshl_b32 {sT0}, {sJ}, 13"); k.e(f"s_lshl_b32 {sT1}, {sW}, 11"); k.e(f"s_add_u32 {sT0}, {sT0}, {sT1}")
        k.e(f"s_add_u32 {sT0}, {sT0}, {sCL}"); k.e(f"s_add_u32 {sT0}, {sT0}, {buf_off}")
        self.xblock([f"buffer_store_dwordx4 {vr(P + 4*p, 4)}, v{vST[p]}, {S_WS}, {sT0} offen" for p in range(2)], "XS")
    def stats(self, S1, G, double=False):
        k = self.k; t = TMP
        k.e(f"v_cndmask_b32_e64 v{t}, v{G}, v{G+1}, {sM1}")
        k.e(f"v_cndmask_b32_e64 v{t}, v{t}, v{G+2}, {sM2}")
        k.e(f"v_cndmask_b32_e64 v{t}, v{t}, v{G+3}, {sM3}")
        k.e(f"v_mul_f32 v{t+1}, {sINV512}, v{S1}")
        k.e(f"v_mul_f32 v{t}, {sINV512}, v{t}")
        k.e(f"v_fma_f32 v{t}, -v{t+1}, v{t+1}, v{t}")
        k.e(f"v_max_f32 v{t}, 0, v{t}")
        k.e(f"v_add_f32 v{t+2}, {sEPS5}, v{t}")
        k.e(f"v_rsq_f32 v{t+6}, v{t+2}")
        k.e(f"v_mul_f32 v{t+7}, v{t+6}, v{t+1}")
        if double:
            k.e(f"v_mul_f32 v{t+3}, v{t+6}, v{t+6}")
            k.e(f"v_mul_f32 v{t+3}, v{t+3}, v{t}")
            k.e(f"v_add_f32 v{t+3}, {sEPS5}, v{t+3}")
            k.e(f"v_rsq_f32 v{t+3}, v{t+3}")
            k.e(f"v_mul_f32 v{t+4}, v{t+6}, v{t+3}")
            k.e(f"v_mul_f32 v{t+5}, v{t+7}, v{t+3}")
        else:
            k.e(f"v_mov_b32 v{t+4}, v{t+6}")
            k.e(f"v_mov_b32 v{t+5}, v{t+7}")
        k.e(f"s_mov_b64 exec, {sDIAG}")
        k.ds(f"ds_write_b128 v{vSA[0]}, {vr(t+4, 4)}", "SW")
        k.e(f"v_subrev_u32 v{t+8}, {L_STAT}, v{vSA[0]}"); k.e(f"v_lshrrev_b32 v{t+8}, 2, v{t+8}"); k.e(f"v_add_u32 v{t+8}, {L_STAT2}, v{t+8}")
        k.ds(f"ds_write_b32 v{t+8}, v{t+4}", "SW")
        k.ds(f"ds_write_b32 v{t+8}, v{t+5} offset:256", "SW")
        k.e("s_mov_b64 exec, -1")
        k.wait(lg="SW")
        k.barrier()
    def offA(self, t, s): return vTA[t], s * 4096
    def prologue(self):
        k = self.k; e = k.e
        e("s_cmp_ge_u32 s2, 256"); e("s_cbranch_scc1 M_done")
        e("s_load_dwordx2 s[8:9], s[0:1], 0"); e("s_load_dwordx2 s[10:11], s[0:1], 64"); e("s_load_dwordx2 s[38:39], s[0:1], 80")
        e(f"v_and_b32 v{vLANE}, 63, v0"); e("v_lshrrev_b32 v2, 6, v0"); e("s_nop 0"); e(f"v_readfirstlane_b32 {sW}, v2")
        e(f"s_getreg_b32 {sXCC}, hwreg(HW_REG_XCC_ID)"); e(f"s_and_b32 {sXCC}, {sXCC}, 15"); e(f"s_add_u32 {sXCC}, {sXCC}, 1")
        e(f"s_and_b32 {sX8}, s2, 7"); e(f"s_lshr_b32 {sT0}, s2, 3")
        e(f"s_lshr_b32 {sU}, {sT0}, 3"); e(f"s_and_b32 {sJ}, {sT0}, 7")
        e(f"s_lshl_b32 {sC}, {sX8}, 2"); e(f"s_add_u32 {sC}, {sC}, {sU}")
        e(f"v_lshlrev_b32 v{vL16}, 4, v{vLANE}"); e(f"v_lshlrev_b32 v{vL4}, 2, v{vLANE}")
        e(f"v_mov_b32 v{vONE}, 1"); e(f"v_mov_b32 v{vZERO}, 0")
        e("s_waitcnt lgkmcnt(0)")
        e("s_mov_b32 s4, s38"); e("s_mov_b32 s5, s39"); e(f"s_mov_b32 s6, {WS_BYTES}"); e("s_mov_b32 s7, 0x00020000")
        e("s_mov_b32 s12, s8"); e("s_mov_b32 s13, s9"); e(f"s_mov_b32 s14, {2048*1024}"); e("s_mov_b32 s15, 0x00020000")
        e("s_mov_b32 s16, s10"); e("s_mov_b32 s17, s11"); e(f"s_mov_b32 s18, {2048*1024}"); e("s_mov_b32 s19, 0x00020000")
        lab = k.newlab("NX")
        e(f"s_cmp_lg_u32 {sW}, 0"); e(f"s_cbranch_scc1 {lab}")
        e(f"s_lshl_b32 {sT0}, s2, 2"); e(f"s_add_u32 {sT0}, {sT0}, {XCC}")
        e(f"v_mov_b32 v{TMP}, {sXCC}")
        e("s_mov_b64 exec, 1")
        k.cond = True; k.vmem(f"buffer_store_dword v{TMP}, off, {S_WS}, {sT0} sc1", "XCCP"); k.cond = False
        e("s_mov_b64 exec, -1")
        k.lab(lab)
        e(f"s_lshl_b32 {sCL}, {sC}, 21"); e(f"s_add_u32 {sCL}, {sCL}, {CLB}")
        e(f"s_lshl_b32 {sFLG}, {sC}, 11")
        e(f"s_lshl_b32 {sT0}, {sJ}, 2"); e(f"s_add_u32 {sT0}, {sT0}, {sW}"); e(f"s_mul_i32 {sWBASE}, {sT0}, {NPOS * 1024}")
        e(f"s_add_u32 {sWBASE}, {sWBASE}, {WSH}"); e(f"s_mov_b32 {sWPOS}, {sWBASE}")
        self.load_atile(X0_OFF)
        e(f"v_and_b32 v{TMP}, 15, v{vLANE}")
        e(f"v_lshrrev_b32 v{TMP+1}, 4, v{vLANE}")
        for t in range(4):
            e(f"s_add_u32 {sT0}, {sW}, {t}"); e(f"s_and_b32 {sT0}, {sT0}, 3")
            e(f"s_lshl_b32 {sT1}, {sT0}, 8")
            e(f"v_lshlrev_b32 v{TMP+2}, 10, v{TMP+1}"); e(f"v_lshlrev_b32 v{TMP+3}, 4, v{TMP}")
            e(f"v_add3_u32 v{vTA[t]}, v{TMP+2}, v{TMP+3}, {sT1}")
            e(f"v_mul_u32_u24 v{TMP+2}, {HSTRIDE}, v{TMP+1}")
            e(f"v_add3_u32 v{vTH[t]}, v{TMP+2}, v{TMP+3}, {sT1}")
            e(f"s_add_u32 {sT2}, {sT1}, {L_STAT}"); e(f"v_add_u32 v{vSA[t]}, {sT2}, v{TMP+3}")
            e(f"s_lshl_b32 {sT2}, {sT0}, 6"); e(f"s_add_u32 {sT2}, {sT2}, {L_STAT2}"); e(f"v_lshlrev_b32 v{TMP+2}, 4, v{TMP+1}"); e(f"v_add_u32 v{vSB[t]}, {sT2}, v{TMP+2}")
            e(f"s_lshl_b32 {sT2}, {sT0}, 14"); e(f"v_lshlrev_b32 v{TMP+2}, 10, v{TMP}"); e(f"v_lshlrev_b32 v{TMP+3}, 3, v{TMP+1}")
            e(f"v_add3_u32 v{TMP+4+t}, v{TMP+2}, v{TMP+3}, {sT2}")
        e(f"s_lshl_b32 {sT0}, {sC}, 16"); e(f"s_lshl_b32 {sT1}, {sJ}, 7"); e(f"s_add_u32 {sT0}, {sT0}, {sT1}")
        e(f"s_lshl_b32 {sT1}, {sW}, 5"); e(f"s_add_u32 {sT0}, {sT0}, {sT1}")
        for t in range(4):
            k.vmem(f"buffer_load_dwordx2 {vr(TMP+8+2*t, 2)}, v{TMP+4+t}, {S_X}, {sT0} offen", "XR")
        self.wrefill(NSLOT)
        e(f"v_lshlrev_b32 v{TMP+2}, 5, v{vLANE}"); e(f"s_lshl_b32 {sT0}, {sX8}, 2"); e(f"s_add_u32 {sT0}, {sT0}, {XCC}")
        e(f"v_mov_b32 v{vXC-3}, v{TMP+2}")
        e(f"s_mov_b32 s67, {sT0}")
        e("s_mov_b32 exec_lo, -1"); e("s_mov_b32 exec_hi, 0")
        k.vmem(f"buffer_load_dword v{vXC}, v{vXC-3}, {S_WS}, s67 offen sc1", "XCC")
        e("s_mov_b64 exec, -1")
        e(f"v_and_b32 v{TMP+2}, 1, v{TMP+1}"); e(f"v_add_u32 v{TMP+2}, {sW}, v{TMP+2}")
        e(f"v_lshrrev_b32 v{TMP+3}, 1, v{TMP+1}"); e(f"v_lshlrev_b32 v{TMP+3}, 10, v{TMP+3}")
        e(f"v_lshlrev_b32 v{TMP+16}, 4, v{TMP}")
        for p in range(2):
            e(f"v_add_u32 v{TMP+17}, {2*p}, v{TMP+2}"); e(f"v_and_b32 v{TMP+17}, 3, v{TMP+17}"); e(f"v_lshlrev_b32 v{TMP+17}, 8, v{TMP+17}")
            e(f"v_add3_u32 v{vST[p]}, v{TMP+3}, v{TMP+16}, v{TMP+17}")
        e(f"s_and_b32 {sT0}, {sJ}, 2")
        e(f"s_lshl_b32 {sT1}, {sJ}, 3"); e(f"s_lshl_b32 {sT2}, {sW}, 1"); e(f"s_add_u32 {sT1}, {sT1}, {sT2}"); e(f"s_lshl_b32 {sT1}, {sT1}, 5")
        for p in range(2):
            e(f"v_and_b32 v{TMP+17}, 1023, v{vST[p]}"); e(f"v_lshrrev_b32 v{TMP+17}, 4, v{TMP+17}")
            e(f"v_lshrrev_b32 v{TMP+18}, 10, v{vST[p]}"); e(f"v_lshlrev_b32 v{TMP+18}, 5, v{TMP+18}")
            l1 = k.newlab("HL"); l2 = k.newlab("HL")
            e(f"s_cmp_eq_u32 {sT0}, 0"); e(f"s_cbranch_scc0 {l1}")
            e(f"v_cmp_le_u32 {sHM[p]}, 62, v{TMP+17}"); e(f"v_subrev_u32 v{TMP+17}, 62, v{TMP+17}")
            e(f"s_branch {l2}")
            k.lab(l1)
            e(f"v_cmp_gt_u32 {sHM[p]}, 2, v{TMP+17}")
            k.lab(l2)
            e(f"v_lshlrev_b32 v{TMP+17}, 4, v{TMP+17}")
            e(f"v_add3_u32 v{vHO[p]}, v{TMP+17}, v{TMP+18}, {sT1}")
        e(f"s_add_u32 {sT1}, {sC}, 2"); e(f"s_cmp_eq_u32 {sT0}, 0"); e(f"s_cselect_b32 {sT1}, {sT1}, {sC}")
        e(f"s_lshl_b32 {sHALO_ST}, {sT1}, 11"); e(f"s_add_u32 {sHALO_ST}, {sHALO_ST}, {HALO}")
        e(f"s_add_u32 {sT1}, {sC}, 1"); e(f"s_lshl_b32 {sHALO_LD}, {sT1}, 11"); e(f"s_add_u32 {sHALO_LD}, {sHALO_LD}, {HALO}")
        e(f"s_lshl_b32 {sT0}, {sX8}, 3"); e(f"s_add_u32 {sT0}, {sT0}, {sJ}"); e(f"s_lshl_b32 {sT0}, {sT0}, 2"); e(f"s_add_u32 {sT0}, {sT0}, {sW}")
        e(f"s_mul_i32 {sKV1}, {sT0}, {4*1280}"); e(f"s_add_u32 {sKV1}, {sKV1}, {KV1}")
        e(f"s_lshl_b32 {sT0}, {sJ}, 2"); e(f"s_add_u32 {sT0}, {sT0}, {sW}"); e(f"s_mul_i32 {sKV2R}, {sT0}, {8*1280}"); e(f"s_add_u32 {sKV2R}, {sKV2R}, {KV2}")
        e(f"s_mul_i32 {sT0}, {sX8}, 1280"); e(f"s_add_u32 {sKV2W}, {sKV2R}, {sT0}")
        e(f"s_mov_b32 s40, 0x22222222"); e("s_mov_b32 s41, 0x22222222"); e("s_mov_b32 s42, 0x44444444"); e("s_mov_b32 s43, 0x44444444")
        e("s_mov_b32 s44, 0x88888888"); e("s_mov_b32 s45, 0x88888888"); e("s_mov_b32 s46, 0x00f0000f"); e("s_mov_b32 s47, 0xf000 << 16 | 0x0f00")
        e(f"s_lshl_b32 {sT0}, {sW}, 3"); e(f"s_lshl_b32 s52, 0xff, {sT0}"); e("s_mov_b32 s53, 0")
        e(f"s_lshr_b32 {sT0}, {sJ}, 1"); e(f"s_lshl_b32 s54, 0x11111111, {sT0}"); e("s_mov_b32 s55, 0")
        e(f"s_mov_b32 {sLOG2E}, 0x3fb8aa3b"); e(f"s_mov_b32 {sEPS6}, 0x358637bd"); e(f"s_mov_b32 {sINV512}, 0x3b000000"); e(f"s_mov_b32 {sEPS5}, 0x3727c5ac")
        for i in range(4): e(f"v_mov_b32 v{vONES+i}, 0x3f803f80")
        import struct
        f2u = lambda x: struct.unpack("<I", struct.pack("<f", x))[0]
        c0 = -2.0 * 0.7978845608028654 * 1.4426950408889634
        e(f"v_mov_b32 v{vC0}, {f2u(c0):#x}"); e(f"v_mov_b32 v{vC1}, {f2u(c0 * 0.044715):#x}")
        e(f"v_lshlrev_b32 v{TMP+17}, 2, v{TMP+1}"); e(f"v_sub_u32 v{TMP+17}, v{TMP}, v{TMP+17}")
        for (reg, e0) in [(vID, 0), (vID + 1, 2)]:
            e(f"v_cmp_eq_u32 vcc, {e0}, v{TMP+17}"); e(f"v_mov_b32 v{TMP+18}, 0x3f80"); e(f"v_cndmask_b32 v{TMP+19}, 0, v{TMP+18}, vcc")
            e(f"v_cmp_eq_u32 vcc, {e0+1}, v{TMP+17}"); e(f"v_mov_b32 v{TMP+18}, 0x3f800000"); e(f"v_cndmask_b32 v{TMP+18}, 0, v{TMP+18}, vcc")
            e(f"v_or_b32 v{reg}, v{TMP+18}, v{TMP+19}")
        k.wait(vm="XR")
        for t in range(4):
            e(f"v_lshlrev_b32 v{X+4*t}, 16, v{TMP+8+2*t}"); e(f"v_and_b32 v{X+4*t+1}, 0xffff0000, v{TMP+8+2*t}")
            e(f"v_lshlrev_b32 v{X+4*t+2}, 16, v{TMP+9+2*t}"); e(f"v_and_b32 v{X+4*t+3}, 0xffff0000, v{TMP+9+2*t}")
        k.wait(vm="AT")
        k.barrier()
    def ln_T(self, acc, creg_list, stat, dst=None):
        k = self.k; dst = acc if dst is None else dst
        for t in range(4):
            for r in range(4):
                k.e(f"v_mul_f32 v{TMP+40+r}, v{stat+4*t+1}, v{creg_list[r]}")
            for r in range(4):
                k.e(f"v_fma_f32 v{dst+4*t+r}, v{stat+4*t}, v{acc+4*t+r}, -v{TMP+40+r}")
    def phi(self, regs):
        k = self.k; t = TMP + 40
        for i in range(0, len(regs), 4):
            g = regs[i:i+4]
            for n, r in enumerate(g): k.e(f"v_mul_f32 v{t+n}, {sLOG2E}, v{r}")
            for n, r in enumerate(g): k.e(f"v_min_f32 v{t+n}, 0, v{t+n}")
            for n, r in enumerate(g): k.e(f"v_exp_f32 v{t+n}, v{t+n}")
            for n, r in enumerate(g): k.e(f"v_max_f32 v{r}, 0, v{r}")
            for n, r in enumerate(g): k.e(f"v_add_f32 v{r}, {sEPS6}, v{r}")
            for n, r in enumerate(g): k.e(f"v_add_f32 v{r}, v{r}, v{t+n}")
    def gelu(self, regs):
        k = self.k; t = TMP + 40
        for i in range(0, len(regs), 4):
            g = regs[i:i+4]
            for n, r in enumerate(g): k.e(f"v_mul_f32 v{t+n}, v{r}, v{r}")
            for n, r in enumerate(g): k.e(f"v_fma_f32 v{t+n}, v{t+n}, v{vC1}, v{vC0}")
            for n, r in enumerate(g): k.e(f"v_mul_f32 v{t+n}, v{t+n}, v{r}")
            for n, r in enumerate(g): k.e(f"v_exp_f32 v{t+n}, v{t+n}")
            for n, r in enumerate(g): k.e(f"v_add_f32 v{t+n}, 1.0, v{t+n}")
            for n, r in enumerate(g): k.e(f"v_rcp_f32 v{t+n}, v{t+n}")
            for n, r in enumerate(g): k.e(f"v_mul_f32 v{r}, v{r}, v{t+n}")
    def read_stats_T(self, dst):
        k = self.k
        for t in range(4): k.ds(f"ds_read_b128 {vr(dst+4*t, 4)}, v{vSA[t]}", "SR")
        k.wait(lg="SR")
    def sentinel_check(self, regs, retry):
        k = self.k; m = TMP + 44
        regs = list(regs)
        k.e(f"v_max_u32 v{m}, v{regs[0]}, v{regs[1]}")
        rest = regs[2:]
        while len(rest) >= 2:
            k.e(f"v_max3_u32 v{m}, v{m}, v{rest[0]}, v{rest[1]}"); rest = rest[2:]
        if rest: k.e(f"v_max_u32 v{m}, v{m}, v{rest[0]}")
        k.e(f"v_cmp_eq_u32 vcc, -1, v{m}")
    def poll_partials(self, n, base_sgpr, layer_off):
        k = self.k; L = k.newlab("KP"); D = k.newlab("KD")
        k.e(f"s_mov_b32 {sCNT}, 0")
        k.lab(L)
        k.e(f"s_add_u32 {sT0}, {base_sgpr}, {layer_off}")
        for i in range(n):
            k.e(f"buffer_load_dwordx4 {vr(TMP+4*i, 4)}, v{vL16}, {S_WS}, {sT0} offen sc1")
            k.e(f"buffer_load_dword v{TMP+4*n+i}, v{vL4}, {S_WS}, {sT0} offen offset:1024 sc1")
            if i + 1 < n: k.e(f"s_add_u32 {sT0}, {sT0}, 1280")
        k.e("s_waitcnt vmcnt(0)")
        m = 250
        regs = list(range(TMP, TMP + 5*n))
        k.e(f"v_max_u32 v{m}, v{regs[0]}, v{regs[1]}")
        rest = regs[2:]
        while len(rest) >= 2:
            k.e(f"v_max3_u32 v{m}, v{m}, v{rest[0]}, v{rest[1]}"); rest = rest[2:]
        if rest: k.e(f"v_max_u32 v{m}, v{m}, v{rest[0]}")
        k.e(f"v_cmp_eq_u32 vcc, -1, v{m}")
        k.e(f"s_cbranch_vccz {D}")
        k.e(f"s_add_u32 {sCNT}, {sCNT}, 1"); k.e(f"s_cmp_lt_u32 {sCNT}, {SPIN_LIMIT}"); k.e(f"s_cbranch_scc1 {L}")
        k.lab(D)
        k.vm = []
        for i in range(1, n):
            for r in range(4): k.e(f"v_add_f32 v{TMP+r}, v{TMP+r}, v{TMP+4*i+r}")
            k.e(f"v_add_f32 v{TMP+4*n}, v{TMP+4*n}, v{TMP+4*n+i}")
    def phase_qkv(self, L):
        k = self.k; e = k.e; base = L * NPOS
        KA, VA, QA, S1, G = ACC, ACC + 16, ACC + 32, ACC + 48, ACC + 52
        ones = vr(vONES, 4)
        k.c(f"==== layer {L} KV pass")
        def body(s, T):
            wk = self.wuse(base + P_KV + 2*s); wv = self.wuse(base + P_KV + 2*s + 1)
            c = "0" if s == 0 else None
            for t in range(4): self.mfma(KA + 4*t, T[t], wk, c)
            for t in range(4): self.mfma(VA + 4*t, T[t], wv, c)
            self.mfma(S1, ones, T[0], c); self.mfma(G, T[0], T[0], c)
            if L == 0:
                self.mfma(ar(aCK, 4), ones, wk, c); self.mfma(ar(aCV, 4), ones, wv, c)
            self.wrefill(base + P_KV + 2*s + 2 + NSLOT)
        self.kloop(16, self.offA, body)
        self.stats(S1, G)
        SA, SB = TMP, TMP + 16
        for t in range(4):
            k.ds(f"ds_read_b128 {vr(SA+4*t, 4)}, v{vSB[t]}", "SR")
            k.ds(f"ds_read_b128 {vr(SB+4*t, 4)}, v{vSB[t]} offset:256", "SR")
        e(f"v_accvgpr_read_b32 v{TMP+32}, a{aCK}"); e(f"v_accvgpr_read_b32 v{TMP+33}, a{aCV}")
        k.wait(lg="SR")
        for (A_, creg) in [(KA, TMP+32), (VA, TMP+33)]:
            for t in range(4):
                for r in range(4): e(f"v_mul_f32 v{TMP+40+r}, v{SB+4*t+r}, v{creg}")
                for r in range(4): e(f"v_fma_f32 v{A_+4*t+r}, v{SA+4*t+r}, v{A_+4*t+r}, -v{TMP+40+r}")
        self.phi(list(range(KA, KA + 16)))
        PK, PV = TMP, TMP + 8
        for t in range(4):
            e(f"v_cvt_pk_bf16_f32 v{PK+2*t}, v{KA+4*t}, v{KA+4*t+1}"); e(f"v_cvt_pk_bf16_f32 v{PK+2*t+1}, v{KA+4*t+2}, v{KA+4*t+3}")
            e(f"v_cvt_pk_bf16_f32 v{PV+2*t}, v{VA+4*t}, v{VA+4*t+1}"); e(f"v_cvt_pk_bf16_f32 v{PV+2*t+1}, v{VA+4*t+2}, v{VA+4*t+3}")
        KV, Z = TMP + 16, TMP + 20
        self.mfma(KV, vr(PK, 4), vr(PV, 4), "0"); self.mfma(Z, vr(PK, 4), ones, "0")
        self.mfma(KV, vr(PK+4, 4), vr(PV+4, 4)); self.mfma(Z, vr(PK+4, 4), ones)
        e(f"v_cndmask_b32_e64 v{Z}, v{Z}, v{Z+1}, {sM1}"); e(f"v_cndmask_b32_e64 v{Z}, v{Z}, v{Z+2}, {sM2}"); e(f"v_cndmask_b32_e64 v{Z}, v{Z}, v{Z+3}, {sM3}")
        if L == 0:
            k.wait(vm="XCC")
            Lp = k.newlab("XP"); Dn = k.newlab("XQ")
            e("s_mov_b32 exec_lo, -1"); e("s_mov_b32 exec_hi, 0"); e(f"s_mov_b32 {sCNT}, 0")
            k.lab(Lp)
            e(f"v_cmp_eq_u32 vcc, 0, v{vXC}"); e(f"s_cbranch_vccz {Dn}")
            e(f"buffer_load_dword v{vXC}, v{vXC-3}, {S_WS}, s67 offen sc1"); e("s_waitcnt vmcnt(0)")
            e(f"s_add_u32 {sCNT}, {sCNT}, 1"); e(f"s_cmp_lt_u32 {sCNT}, {SPIN_LIMIT}"); e(f"s_cbranch_scc1 {Lp}")
            k.lab(Dn)
            e(f"v_cmp_ne_u32 vcc, {sXCC}, v{vXC}")
            e("s_nop 1")
            e(f"s_cmp_eq_u64 vcc, 0"); e(f"s_cselect_b32 {sMODE}, 1, 0")
            e("s_mov_b64 exec, -1")
            if getattr(self, "force_slow", False): e(f"s_mov_b32 {sMODE}, 0")
        lay1 = L * (8*8*4*4*1280)
        e(f"s_mul_i32 {sT0}, {sU}, 1280"); e(f"s_add_u32 {sT0}, {sT0}, {sKV1}"); e(f"s_add_u32 {sT0}, {sT0}, {lay1}")
        self.xblock([f"buffer_store_dwordx4 {vr(KV, 4)}, v{vL16}, {S_WS}, {sT0} offen",
                     f"buffer_store_dword v{Z}, v{vL4}, {S_WS}, {sT0} offen offset:1024"], "KVS")
        k.c("==== Q pass")
        def bodyq(s, T):
            wq = self.wuse(base + P_Q + s)
            c = "0" if s == 0 else None
            for t in range(4): self.mfma(QA + 4*t, wq, T[t], c)
            if L == 0: self.mfma(ar(aCQ, 4), wq, ones, c)
            self.wrefill(base + P_Q + s + 1 + NSLOT)
        self.kloop(16, self.offA, bodyq)
        k.barrier()
        ST = TMP + 16
        self.read_stats_T(ST)
        for r in range(4): e(f"v_accvgpr_read_b32 v{TMP+32+r}, a{aCQ+r}")
        self.ln_T(QA, [TMP+32+r for r in range(4)], ST)
        self.phi(list(range(QA, QA + 16)))
        for t in range(4):
            e(f"v_cvt_pk_bf16_f32 v{PQ+2*t}, v{QA+4*t}, v{QA+4*t+1}"); e(f"v_cvt_pk_bf16_f32 v{PQ+2*t+1}, v{QA+4*t+2}, v{QA+4*t+3}")
        if self.stop == 10 + 100*L: return
        k.c("==== kv all-reduce")
        self.poll_partials(4, sKV1, lay1)
        lay2 = L * (32*8*1280)
        lab = k.newlab("K2")
        e(f"s_cmp_lg_u32 {sU}, {sW}"); e(f"s_cbranch_scc1 {lab}")
        e(f"s_add_u32 {sT0}, {sKV2W}, {lay2}")
        e(f"buffer_store_dwordx4 {vr(TMP, 4)}, v{vL16}, {S_WS}, {sT0} offen sc1")
        e(f"buffer_store_dword v{TMP+16}, v{vL4}, {S_WS}, {sT0} offen offset:1024 sc1")
        k.lab(lab)
        e("s_nop 1")
        self.poll_partials(8, sKV2R, lay2)
        KVb, Zb = TMP + 40, TMP + 42
        for r in range(4): e(f"v_mov_b32_dpp v{TMP+4+r}, v{TMP+32} quad_perm:[{r},{r},{r},{r}] row_mask:0xf bank_mask:0xf")
        e(f"v_cvt_pk_bf16_f32 v{KVb}, v{TMP}, v{TMP+1}"); e(f"v_cvt_pk_bf16_f32 v{KVb+1}, v{TMP+2}, v{TMP+3}")
        e(f"v_cvt_pk_bf16_f32 v{Zb}, v{TMP+4}, v{TMP+5}"); e(f"v_cvt_pk_bf16_f32 v{Zb+1}, v{TMP+6}, v{TMP+7}")
        NUM, DEN = ACC, ACC + 16
        for t in range(4):
            self.mfma(NUM+4*t, vr(KVb, 2), vr(PQ+2*t, 2), "0", k16=True)
            self.mfma(DEN+4*t, vr(Zb, 2), vr(PQ+2*t, 2), "0", k16=True)
        for t in range(4): e(f"v_add_f32 v{DEN+4*t}, {sEPS6}, v{DEN+4*t}")
        for t in range(4): e(f"v_rcp_f32 v{DEN+4*t}, v{DEN+4*t}")
        for t in range(4):
            for r in range(4): e(f"v_mul_f32 v{NUM+4*t+r}, v{NUM+4*t+r}, v{DEN+4*t}")
        self.pack_store_T(NUM, LAYER_OFF + L*LAYER_SZ + O_OFF)
        self.signal(6*L + 0)
    def simple_in(self, L, phase, buf, hl=False):
        self.flag_addr(phase); self.poll(sPM_T, sT0)
        self.load_atile(buf, hl)
    def phase_wo(self, L):
        k = self.k; base = L * NPOS; lb = LAYER_OFF + L*LAYER_SZ
        k.c("==== wo")
        self.simple_in(L, 6*L + 0, lb + O_OFF)
        k.wait(vm="AT"); k.barrier()
        def body(s, T):
            w = self.wuse(base + P_WO + s)
            for t in range(4): self.mfma(X + 4*t, w, T[t])
            self.wrefill(base + P_WO + s + 1 + NSLOT)
        self.kloop(16, self.offA, body)
        k.barrier()
        self.pack_store_T(X, lb + XP_OFF)
        self.signal(6*L + 1)
    def phase_w1(self, L):
        k = self.k; e = k.e; base = L * NPOS; lb = LAYER_OFF + L*LAYER_SZ
        k.c("==== w1")
        self.simple_in(L, 6*L + 1, lb + XP_OFF)
        k.wait(vm="AT"); k.barrier()
        HA, S1, G = ACC, ACC + 48, ACC + 52
        ones = vr(vONES, 4)
        def body(s, T):
            w = self.wuse(base + P_W1 + s)
            c = "0" if s == 0 else None
            for t in range(4): self.mfma(HA + 4*t, w, T[t], c)
            self.mfma(S1, ones, T[0], c); self.mfma(G, T[0], T[0], c)
            if L == 0: self.mfma(ar(aC1, 4), w, ones, c)
            self.wrefill(base + P_W1 + s + 1 + NSLOT)
        self.kloop(16, self.offA, body)
        self.stats(S1, G, double=True)
        ST = TMP + 16
        self.read_stats_T(ST)
        for r in range(4): e(f"v_accvgpr_read_b32 v{TMP+32+r}, a{aC1+r}")
        self.ln_T(HA, [TMP+32+r for r in range(4)], ST)
        for t in range(4):
            for r in range(4): e(f"v_fma_f32 v{XN+4*t+r}, v{ST+4*t+2}, v{X+4*t+r}, -v{ST+4*t+3}")
        self.gelu(list(range(HA, HA + 16)))
        self.pack_store_T(HA, lb + H_OFF)
        e(f"s_add_u32 {sT0}, {sHALO_ST}, {L * 34 * 2048}")
        for p in range(2):
            lab = k.newlab("HS")
            e(f"s_mov_b64 exec, {sHM[p]}"); e(f"s_cbranch_execz {lab}")
            k.cond = True; k.vmem(f"buffer_store_dwordx4 {vr(TMP+4*p, 4)}, v{vHO[p]}, {S_WS}, {sT0} offen sc1", "HS"); k.cond = False
            k.lab(lab)
            e("s_mov_b64 exec, -1")
        self.signal(6*L + 2)
    def phase_w2(self, L):
        k = self.k; e = k.e; base = L * NPOS; lb = LAYER_OFF + L*LAYER_SZ
        k.c("==== w2")
        self.simple_in(L, 6*L + 2, lb + H_OFF, hl=True)
        lab = k.newlab("HW"); Lp = k.newlab("HP"); Dn = k.newlab("HD")
        e(f"s_cmp_lg_u32 {sW}, 0"); e(f"s_cbranch_scc1 {lab}")
        e(f"v_lshlrev_b32 v{TMP+8}, 5, v{vLANE}")
        e(f"s_add_u32 {sT0}, {sHALO_LD}, {L * 34 * 2048}"); e(f"s_mov_b32 {sCNT}, 0")
        k.lab(Lp)
        e(f"buffer_load_dwordx4 {vr(TMP, 4)}, v{TMP+8}, {S_WS}, {sT0} offen sc1")
        e(f"buffer_load_dwordx4 {vr(TMP+4, 4)}, v{TMP+8}, {S_WS}, {sT0} offen offset:16 sc1")
        e("s_waitcnt vmcnt(0)")
        e(f"v_max3_u32 v{TMP+9}, v{TMP}, v{TMP+1}, v{TMP+2}"); e(f"v_max3_u32 v{TMP+9}, v{TMP+9}, v{TMP+3}, v{TMP+4}")
        e(f"v_max3_u32 v{TMP+9}, v{TMP+9}, v{TMP+5}, v{TMP+6}"); e(f"v_max_u32 v{TMP+9}, v{TMP+9}, v{TMP+7}")
        e(f"v_cmp_eq_u32 vcc, -1, v{TMP+9}"); e(f"s_cbranch_vccz {Dn}")
        e(f"s_add_u32 {sCNT}, {sCNT}, 1"); e(f"s_cmp_lt_u32 {sCNT}, {SPIN_LIMIT}"); e(f"s_cbranch_scc1 {Lp}")
        k.lab(Dn)
        e(f"v_mul_u32_u24 v{TMP+9}, {HSTRIDE}, v{vLANE}"); e(f"v_bfe_u32 v{TMP+10}, v{vLANE}, 4, 1"); e(f"v_mul_u32_u24 v{TMP+10}, 1056, v{TMP+10}")
        e(f"v_add_u32 v{TMP+9}, v{TMP+9}, v{TMP+10}")
        e(f"ds_write_b128 v{TMP+9}, {vr(TMP, 4)}"); e(f"ds_write_b128 v{TMP+9}, {vr(TMP+4, 4)} offset:16")
        e("s_waitcnt lgkmcnt(0)")
        k.lab(lab)
        k.wait(vm="AT"); k.barrier()
        delta = [1, -1, 2, -2]
        def offH(t, s):
            off = (s % 8) * 4 * HSTRIDE + 32 - delta[s // 4] * 16
            return vTH[t], off
        def body(s, T):
            if s == 6:
                pass
            w = self.wuse(base + P_W2 + s)
            for t in range(4): self.mfma(XN + 4*t, w, T[t])
            self.wrefill(base + P_W2 + s + 1 + NSLOT)
            if s == 6:
                for t in range(4): e(f"v_add_u32 v{vTH[t]}, {8*4*HSTRIDE}, v{vTH[t]}")
        self.kloop(16, offH, body)
        for t in range(4): e(f"v_subrev_u32 v{vTH[t]}, {8*4*HSTRIDE}, v{vTH[t]}")
        k.barrier()
        self.pack_store_T(XN, lb + X1_OFF)
        for i in range(16): e(f"v_add_f32 v{X+i}, v{X+i}, v{XN+i}")
        self.signal(6*L + 3)
    def phase_mlp(self, L):
        k = self.k; e = k.e; base = L * NPOS; lb = LAYER_OFF + L*LAYER_SZ
        k.c("==== w3")
        self.simple_in(L, 6*L + 3, lb + X1_OFF)
        k.wait(vm="AT"); k.barrier()
        B0, B1, B2, B3, S1, G = ACC, ACC+16, ACC+32, ACC+48, ACC+64, ACC+68
        ones = vr(vONES, 4)
        def body1(s, T):
            w0 = self.wuse(base + P_W3A + 2*s); w1 = self.wuse(base + P_W3A + 2*s + 1)
            c = "0" if s == 0 else None
            for t in range(4): self.mfma(B0 + 4*t, w0, T[t], c)
            for t in range(4): self.mfma(B1 + 4*t, w1, T[t], c)
            self.mfma(S1, ones, T[0], c); self.mfma(G, T[0], T[0], c)
            if L == 0:
                self.mfma(ar(aC3, 4), w0, ones, c); self.mfma(ar(aC3+4, 4), w1, ones, c)
            self.wrefill(base + P_W3A + 2*s + 2 + NSLOT)
        self.kloop(16, self.offA, body1)
        def body2(s, T):
            w0 = self.wuse(base + P_W3B + 2*s); w1 = self.wuse(base + P_W3B + 2*s + 1)
            c = "0" if s == 0 else None
            for t in range(4): self.mfma(B2 + 4*t, w0, T[t], c)
            if L == 0: self.mfma(ar(aC3+8, 4), w0, ones, c)
            lab = k.newlab("W3S")
            e(f"s_cmp_ge_u32 {sW}, 2"); e(f"s_cbranch_scc1 {lab}")
            for t in range(4): self.mfma(B3 + 4*t, w1, T[t], c)
            if L == 0: self.mfma(ar(aC3+12, 4), w1, ones, c)
            k.lab(lab)
            self.wrefill(base + P_W3B + 2*s + 2 + NSLOT)
        self.kloop(16, self.offA, body2)
        self.stats(S1, G)
        ST = TMP + 16
        self.read_stats_T(ST)
        e(f"s_lshl_b32 {sT3}, {sW}, 12")
        e(f"s_add_u32 {sT4}, {sT3}, {16*1024}")
        e(f"s_lshl_b32 {sT5}, {sW}, 11"); e(f"s_add_u32 {sT5}, {sT5}, {20*1024}")
        e(f"s_cmp_ge_u32 {sW}, 2"); e(f"s_cselect_b32 {sT4}, {sT5}, {sT4}")
        def epi(Bk, cidx, srow, extra):
            for r in range(4): e(f"v_accvgpr_read_b32 v{TMP+32+r}, a{aC3+4*cidx+r}")
            self.ln_T(Bk, [TMP+32+r for r in range(4)], ST)
            self.gelu(list(range(Bk, Bk + 16)))
            self.pack_store_T(Bk, None)
            for p in range(2):
                e(f"v_add_u32 v{TMP+8+p}, {srow}, v{vST[p]}")
                k.ds(f"ds_write_b128 v{TMP+8+p}, {vr(TMP+4*p, 4)} offset:{extra}", "HW")
        e(f"s_add_u32 {sT3}, {sT3}, {L_H2A}"); e(f"s_add_u32 {sT4}, {sT4}, {L_H2A}")
        epi(B0, 0, sT3, 0); epi(B1, 1, sT3, 2048); epi(B2, 2, sT4, 0)
        lab = k.newlab("W3E")
        e(f"s_cmp_ge_u32 {sW}, 2"); e(f"s_cbranch_scc1 {lab}")
        n0 = len(k.lg)
        epi(B3, 3, sT4, 2048)
        k.lab(lab)
        e("s_waitcnt lgkmcnt(0)"); k.lg = []
        k.barrier()
        k.c("==== w4")
        vH = TMP + 50
        e(f"v_lshrrev_b32 v{vH}, 4, v{vLANE}"); e(f"v_lshlrev_b32 v{vH}, 10, v{vH}"); e(f"v_and_b32 v{vH+1}, 15, v{vLANE}"); e(f"v_lshlrev_b32 v{vH+1}, 4, v{vH+1}")
        e(f"v_add_u32 v{vH}, v{vH}, v{vH+1}"); e(f"v_add_u32 v{vH}, {L_H2A}, v{vH}")
        def offH2(t, s): return vH, s*4096 + t*256
        def body4(s, T):
            c = "0" if s == 0 else None
            for b in range(8):
                w = self.wuse(base + P_W4 + 8*s + b)
                for t in range(4): self.mfma(ACC + 16*b + 4*t, w, T[t], c)
                self.wrefill(base + P_W4 + 8*s + b + 1 + NSLOT)
        self.kloop(7, offH2, body4)
        e(f"s_lshl_b32 {sT0}, {sW}, 17"); e(f"s_lshl_b32 {sT1}, {sJ}, 11"); e(f"s_add_u32 {sT0}, {sT0}, {sT1}")
        e(f"s_add_u32 {sT0}, {sT0}, {sCL}"); e(f"s_add_u32 {sT0}, {sT0}, {lb + PART_OFF}")
        stores = []
        for b in range(8):
            wp = b & 3
            order = [(wp + i) & 3 for i in range(4)]
            pass
        def emit_part(flag):
            for b in range(8):
                wp = b & 3
                order = [(wp + i) & 3 for i in range(4)]
                P = TMP + 8*(b & 3)
                for i, t in enumerate(order):
                    e(f"v_cvt_pk_bf16_f32 v{P+2*i}, v{ACC+16*b+4*t}, v{ACC+16*b+4*t+1}")
                    e(f"v_cvt_pk_bf16_f32 v{P+2*i+1}, v{ACC+16*b+4*t+2}, v{ACC+16*b+4*t+3}")
                if b > 0: e(f"s_add_u32 {sT0}, {sT0}, 16384")
                e(f"buffer_store_dwordx4 {vr(P, 4)}, v{vL16}, {S_WS}, {sT0} offen {flag}")
                e(f"buffer_store_dwordx4 {vr(P+4, 4)}, v{vL16}, {S_WS}, {sT0} offen offset:1024 {flag}")
        slow = k.newlab("PS"); done = k.newlab("PD")
        e(f"s_cmp_eq_u32 {sMODE}, 0"); e(f"s_cbranch_scc1 {slow}")
        emit_part(""); e(f"s_branch {done}")
        k.lab(slow); emit_part("sc1"); k.lab(done)
        for _ in range(16): k.vm.append(("XS", False))
        self.signal(6*L + 4)
        k.c("==== partial reduce")
        self.flag_addr(6*L + 4); self.poll(sPM_P, sT0)
        e(f"s_lshl_b32 {sT0}, {sJ}, 2"); e(f"s_add_u32 {sT0}, {sT0}, {sW}"); e(f"s_lshl_b32 {sT0}, {sT0}, 14")
        e(f"s_add_u32 {sT0}, {sT0}, {sCL}"); e(f"s_add_u32 {sT0}, {sT0}, {lb + PART_OFF}")
        for i in range(16):
            if i % 4 == 0 and i > 0: e(f"s_add_u32 {sT0}, {sT0}, 4096")
            k.vmem(f"buffer_load_dwordx4 {vr(ACC+4*i, 4)}, v{vL16}, {S_WS}, {sT0} offen offset:{(i%4)*1024}", ("PT", i))
        idn = vr(vID, 2)
        for i in range(16):
            k.wait(vm=("PT", i))
            p = i & 1
            self.mfma(X + 4*(2*p), idn, vr(ACC+4*i, 2), k16=True)
            self.mfma(X + 4*(2*p+1), idn, vr(ACC+4*i+2, 2), k16=True)
        if L + 1 < self.nlayers or self.stop < 99:
            self.pack_store_T(X, lb + X2_OFF)
            self.signal(6*L + 5)
        if L + 1 == self.nlayers:
            self.pack_store_T(X, None)
            e(f"s_lshl_b32 {sT0}, {sC}, 16"); e(f"s_lshl_b32 {sT1}, {sJ}, 7"); e(f"s_add_u32 {sT0}, {sT0}, {sT1}")
            e(f"s_lshl_b32 {sT1}, {sW}, 5"); e(f"s_add_u32 {sT0}, {sT0}, {sT1}")
            for p in range(2):
                e(f"v_and_b32 v{TMP+8}, 1023, v{vST[p]}"); e(f"v_lshlrev_b32 v{TMP+8}, 6, v{TMP+8}")
                e(f"v_lshrrev_b32 v{TMP+9}, 10, v{vST[p]}"); e(f"v_lshlrev_b32 v{TMP+9}, 4, v{TMP+9}")
                e(f"v_add_u32 v{TMP+8+2*p+10}, v{TMP+8}, v{TMP+9}")
                k.vmem(f"buffer_store_dwordx4 {vr(TMP+4*p, 4)}, v{TMP+8+2*p+10}, {S_OUT}, {sT0} offen", "OUT")
    def next_in(self, L):
        k = self.k
        lb = LAYER_OFF + (L-1)*LAYER_SZ
        self.simple_in(L, 6*(L-1) + 5, lb + X2_OFF)
        k.wait(vm="AT"); k.barrier()
    def gen(self):
        k = self.k
        self.prologue()
        for L in range(self.nlayers):
            if L > 0: self.next_in(L)
            for i, ph in enumerate([self.phase_qkv, self.phase_wo, self.phase_w1, self.phase_w2, self.phase_mlp]):
                ph(L)
                if self.stop == 100*L + i + 1 or self.stop == 10 + 100*L: break
            else:
                continue
            break
        k.wait_all()
        k.lab("M_done")
        k.e("s_endpgm")
        return k.L

def gen_main(stop=99, nlayers=2, slow=0):
    m = Main(stop, nlayers)
    m.force_slow = bool(int(slow))
    return m.gen()
```

```python
from asmlib import *
from layout import *

PREP_WGS = 512

def gen_prep():
    k = K(); e = k.e
    e(f"s_cmp_ge_u32 s2, {PREP_WGS}")
    e("s_cbranch_scc1 P_done")
    e("s_load_dwordx2 s[4:5], s[0:1], 0")
    e("s_load_dwordx4 s[8:11], s[0:1], 8")
    e("s_load_dwordx4 s[12:15], s[0:1], 32")
    e("s_load_dwordx4 s[16:19], s[0:1], 48")
    e("s_load_dwordx2 s[20:21], s[0:1], 80")
    e("v_and_b32 v1, 63, v0")
    e("v_lshrrev_b32 v2, 6, v0")
    e("s_nop 0")
    e("v_readfirstlane_b32 s22, v2")
    e("s_lshl_b32 s23, s2, 2")
    e("s_add_u32 s23, s23, s22")
    e("v_lshlrev_b32 v3, 4, v1")
    e("s_waitcnt lgkmcnt(0)")
    e("s_mov_b32 s24, s20"); e("s_mov_b32 s25, s21"); e(f"s_mov_b32 s26, {WS_BYTES}"); e("s_mov_b32 s27, 0x00020000")
    e("s_mov_b32 s28, s4"); e("s_mov_b32 s29, s5"); e(f"s_mov_b32 s30, {2048*1024}"); e("s_mov_b32 s31, 0x00020000")
    e("s_lshr_b32 s40, s23, 6")
    e("s_and_b32 s41, s23, 63")
    e("s_and_b32 s42, s41, 7")
    e("s_lshr_b32 s43, s41, 3")
    e("v_lshrrev_b32 v4, 3, v1")
    e("v_and_b32 v5, 7, v1")
    e("v_lshlrev_b32 v6, 10, v4"); e("v_lshlrev_b32 v7, 4, v5"); e("v_add_u32 v6, v6, v7")
    e("s_lshl_b32 s44, s40, 16"); e("s_lshl_b32 s45, s42, 13"); e("s_add_u32 s44, s44, s45")
    e("s_lshl_b32 s45, s43, 7"); e("s_add_u32 s44, s44, s45")
    e("buffer_load_dwordx4 v[8:11], v6, s[28:31], s44 offen")
    e("v_lshlrev_b32 v12, 10, v5"); e("v_lshlrev_b32 v13, 4, v4"); e("v_add_u32 v12, v12, v13")
    e("s_lshl_b32 s46, s40, 21"); e(f"s_add_u32 s46, s46, {CLB + X0_OFF}")
    e("s_lshl_b32 s45, s43, 13"); e("s_add_u32 s46, s46, s45")
    e("s_lshl_b32 s45, s42, 7"); e("s_add_u32 s46, s46, s45")
    e("s_cmp_ge_u32 s23, 1664"); e("s_cbranch_scc1 P_now")
    def kk(r):
        e(f"s_and_b32 s52, {r}, 15"); e(f"s_lshr_b32 s53, {r}, 4")
    def dest_simple(pbase):
        e("s_lshl_b32 s54, s53, 2")
        e(f"s_add_u32 s55, s52, {pbase}")
        for b in range(4):
            e(f"s_add_u32 s60, s54, {b}"); e(f"s_mul_i32 s60, s60, {NPOS}"); e("s_add_u32 s60, s60, s55"); e(f"s_lshl_b32 s{56+b}, s60, 10")
    e("s_cmp_lt_u32 s23, 384"); e("s_cbranch_scc0 P_s1")
    e("s_mov_b32 s48, s8"); e("s_mov_b32 s49, s9"); e("s_mov_b32 s50, 3072"); e(f"s_mov_b32 s51, {512*3072}")
    kk("s23")
    e("s_lshr_b32 s61, s53, 3")
    e("s_and_b32 s62, s53, 7")
    e("s_lshl_b32 s55, s52, 1"); e("s_add_u32 s55, s55, s61"); e("s_sub_u32 s55, s55, 1")
    e(f"s_add_u32 s63, s52, {P_Q}")
    e("s_cmp_eq_u32 s61, 0"); e("s_cselect_b32 s55, s63, s55")
    e("s_lshl_b32 s54, s62, 2")
    for b in range(4):
        e(f"s_add_u32 s60, s54, {b}"); e(f"s_mul_i32 s60, s60, {NPOS}"); e("s_add_u32 s60, s60, s55"); e(f"s_lshl_b32 s{56+b}, s60, 10")
    e("s_branch P_go")
    for (lab, nxt, lo, hi, p0, p1, pb) in [("P_s1", "P_s2", 384, 512, 10, 11, P_WO), ("P_s2", "P_s3", 512, 640, 12, 13, P_W1), ("P_s3", "P_s4", 640, 768, 14, 15, P_W2)]:
        k.lab(lab)
        e(f"s_cmp_lt_u32 s23, {hi}"); e(f"s_cbranch_scc0 {nxt}")
        e(f"s_mov_b32 s48, s{p0}"); e(f"s_mov_b32 s49, s{p1}"); e("s_mov_b32 s50, 1024"); e(f"s_mov_b32 s51, {512*1024}")
        e(f"s_sub_u32 s47, s23, {lo}")
        kk("s47")
        dest_simple(pb)
        e("s_branch P_go")
    k.lab("P_s4")
    e("s_cmp_lt_u32 s23, 1216"); e("s_cbranch_scc0 P_s5")
    e("s_mov_b32 s48, s16"); e("s_mov_b32 s49, s17"); e("s_mov_b32 s50, 3584"); e(f"s_mov_b32 s51, {512*3584}")
    e("s_sub_u32 s47, s23, 768")
    kk("s47")
    for b in range(4):
        e("s_lshl_b32 s60, s53, 2"); e(f"s_add_u32 s60, s60, {b}")
        e("s_mul_i32 s61, s60, 4682"); e("s_lshr_b32 s61, s61, 16")
        e("s_mul_i32 s62, s61, 14"); e("s_sub_u32 s62, s60, s62")
        e("s_lshr_b32 s63, s62, 1")
        e("s_sub_u32 s64, s63, 4")
        e("s_cmp_ge_u32 s62, 8"); e("s_cselect_b32 s63, s64, s63")
        e("s_sub_u32 s64, s62, 10")
        e("s_cmp_ge_u32 s62, 12"); e("s_cselect_b32 s63, s64, s63")
        e("s_and_b32 s64, s62, 1")
        e("s_cmp_ge_u32 s62, 12"); e("s_cselect_b32 s64, 0, s64")
        e("s_lshl_b32 s65, s52, 1"); e("s_add_u32 s64, s64, s65")
        e(f"s_add_u32 s65, s64, {P_W3A}"); e(f"s_add_u32 s64, s64, {P_W3B}")
        e("s_cmp_ge_u32 s62, 8"); e("s_cselect_b32 s64, s64, s65")
        e("s_lshl_b32 s61, s61, 2"); e("s_add_u32 s61, s61, s63"); e(f"s_mul_i32 s61, s61, {NPOS}"); e("s_add_u32 s61, s61, s64")
        e(f"s_lshl_b32 s{56+b}, s61, 10")
    e("s_branch P_go")
    k.lab("P_s5")
    e("s_mov_b32 s48, s18"); e("s_mov_b32 s49, s19"); e("s_mov_b32 s50, 1024"); e(f"s_mov_b32 s51, {1792*1024}")
    e("s_sub_u32 s47, s23, 1216")
    e("s_lshr_b32 s52, s47, 3"); e("s_and_b32 s53, s47, 7")
    e("s_mul_i32 s61, s52, 9363"); e("s_lshr_b32 s61, s61, 16")
    e("s_mul_i32 s62, s61, 7"); e("s_sub_u32 s62, s52, s62")
    e("s_lshr_b32 s63, s53, 1")
    e("s_and_b32 s64, s53, 1"); e("s_lshl_b32 s64, s64, 2"); e("s_lshl_b32 s65, s62, 3"); e("s_add_u32 s64, s64, s65"); e(f"s_add_u32 s64, s64, {P_W4}")
    e("s_lshl_b32 s61, s61, 2"); e("s_add_u32 s61, s61, s63"); e(f"s_mul_i32 s61, s61, {NPOS}"); e("s_add_u32 s61, s61, s64")
    for b in range(4):
        e(f"s_add_u32 s60, s61, {b}"); e(f"s_lshl_b32 s{56+b}, s60, 10")
    k.lab("P_go")
    e("s_mov_b32 s66, s50")
    e("s_mov_b32 s50, s51"); e("s_mov_b32 s51, 0x00020000")
    e("v_mul_lo_u32 v14, v4, s66"); e("v_add_u32 v14, v14, v7")
    e("s_mul_i32 s67, s52, s66"); e("s_lshl_b32 s67, s67, 5"); e("s_lshl_b32 s68, s53, 7"); e("s_add_u32 s67, s67, s68")
    e("s_lshl_b32 s68, s66, 3")
    e("s_lshl_b32 s69, s22, 12")
    e("s_mov_b32 m0, s69")
    for i in range(4):
        e(f"buffer_load_dwordx4 v14, s[48:51], s67 offen lds")
        if i < 3:
            e("s_add_u32 s67, s67, s68"); e("s_add_u32 m0, m0, 1024")
    e("v_lshrrev_b32 v15, 4, v1"); e("v_lshlrev_b32 v15, 3, v15")
    e("v_lshrrev_b32 v16, 2, v1"); e("v_and_b32 v16, 3, v16"); e("v_add_u32 v15, v15, v16"); e("v_lshlrev_b32 v15, 7, v15")
    e("v_and_b32 v16, 3, v1"); e("v_lshlrev_b32 v16, 3, v16"); e("v_add_u32 v15, v15, v16"); e("v_add_u32 v15, s69, v15")
    e("s_waitcnt vmcnt(0)")
    for b in range(4):
        e(f"ds_read_b64_tr_b16 v[{20+4*b}:{21+4*b}], v15 offset:{b*32}")
        e(f"ds_read_b64_tr_b16 v[{22+4*b}:{23+4*b}], v15 offset:{b*32+512}")
    e("s_waitcnt lgkmcnt(0)")
    for b in range(4):
        e(f"s_add_u32 s{56+b}, s{56+b}, {WSH}")
        e(f"buffer_store_dwordx4 v[{20+4*b}:{23+4*b}], v3, s[24:27], s{56+b} offen")
    k.lab("P_now")
    e("s_waitcnt vmcnt(0)")
    e("buffer_store_dwordx4 v[8:11], v12, s[24:27], s46 offen")
    nfill = (SENT_END - KV1) // 1024
    for r in range(2):
        if r == 1:
            e(f"s_cmp_ge_u32 s23, {nfill - 2048}"); e("s_cbranch_scc1 P_nof")
        e(f"s_add_u32 s70, s23, {2048*r}"); e("s_lshl_b32 s70, s70, 10"); e(f"s_add_u32 s70, s70, {KV1}")
        e("v_mov_b32 v40, -1")
        for layer in range(2):
            for half in range(2):
                a1 = HALO + (layer*34 + 1)*2048 + half*1024
                a2 = HALO + (layer*34 + 32)*2048 + half*1024
                l1 = k.newlab("P_h"); l2 = k.newlab("P_h")
                e(f"s_cmp_lg_u32 s70, {a1}"); e(f"s_cbranch_scc1 {l1}")
                e("v_cmp_gt_u32 vcc, 32, v1"); e("v_cndmask_b32 v40, v40, 0, vcc" if False else "v_cndmask_b32_e64 v40, v40, 0, vcc")
                k.lab(l1)
                e(f"s_cmp_lg_u32 s70, {a2}"); e(f"s_cbranch_scc1 {l2}")
                e("v_cmp_le_u32 vcc, 32, v1"); e("v_cndmask_b32_e64 v40, v40, 0, vcc")
                k.lab(l2)
        e("v_mov_b32 v41, v40"); e("v_mov_b32 v42, v40"); e("v_mov_b32 v43, v40")
        e("buffer_store_dwordx4 v[40:43], v3, s[24:27], s70 offen")
        e("s_nop 1")
    k.lab("P_nof")
    e(f"s_cmp_ge_u32 s23, {ZERO_END//1024}"); e("s_cbranch_scc1 P_done")
    e("s_lshl_b32 s70, s23, 10")
    e("v_mov_b32 v44, 0"); e("v_mov_b32 v45, 0"); e("v_mov_b32 v46, 0"); e("v_mov_b32 v47, 0")
    e("buffer_store_dwordx4 v[44:47], v3, s[24:27], s70 offen")
    k.lab("P_done")
    e("s_endpgm")
    return k.L
```

```python
import sys, importlib
from asmlib import *
from layout import *
import prep

HEAD = """; Kernarg layout (88 bytes): A_x 0, A_wqkv 8, A_wo 16, B_x 24, B_w1 32, B_w2 40, B_w3 48, B_w4 56, out 64, debug 72, ws 80
"""

def kernel_text(name, lines, vgpr, accum, sgpr=102):
    body, nn = pad_hazards(lines)
    s = f".globl {name}\n.p2align 8\n.type {name},@function\n{name}:\n" + "\n".join(body) + "\n"
    d = f""".amdhsa_kernel {name}
  .amdhsa_next_free_vgpr {vgpr}
  .amdhsa_next_free_sgpr {sgpr}
  .amdhsa_accum_offset {accum}
  .amdhsa_group_segment_fixed_size 0
  .amdhsa_kernarg_size 88
  .amdhsa_user_sgpr_count 2
  .amdhsa_user_sgpr_kernarg_segment_ptr 1
  .amdhsa_system_sgpr_workgroup_id_x 1
  .amdhsa_float_denorm_mode_32 3
  .amdhsa_float_denorm_mode_16_64 3
.end_amdhsa_kernel
"""
    return s, d, nn, len(body)

def build(kernels):
    hdr = HEAD
    for (name, lines, vgpr, accum, grid, block, lds) in kernels:
        hdr += f"; @launch kernel={name} grid=({grid},1,1) block=({block},1,1) lds={lds}\n"
    txt = '.amdgcn_target "amdgcn-amd-amdhsa--gfx950"\n.text\n'
    desc = '.section .rodata,"a"\n'
    for (name, lines, vgpr, accum, grid, block, lds) in kernels:
        s, d, nn, n = kernel_text(name, lines, vgpr, accum)
        sys.stderr.write(f"{name}: {n} lines, {nn} hazard nops\n")
        txt += s
        desc += ".p2align 6\n" + d
    return hdr + txt + desc

if __name__ == "__main__":
    out = sys.argv[1] if len(sys.argv) > 1 else "k.s"
    what = sys.argv[2] if len(sys.argv) > 2 else "all"
    ks = [("prep_kernel", prep.gen_prep(), 64, 64, prep.PREP_WGS, 256, 16384)]
    if what != "prep":
        import mainl2 as mainl
        opts = dict(a.split("=") for a in sys.argv[3:])
        ks.append(("main_kernel", mainl.gen_main(**opts), 512, 256, 256, 256, mainl.LDS_BYTES))
    open(out, "w").write(build(ks))
```

```python
FLG   = 0x000000
XCC   = 0x010000
ZERO_END = 0x020000
KV1   = 0x020000
KV2   = 0x2A0000
KV2_ENT = 1024
HALO  = 0x340000
SENT_END = 0x362000
WSH   = 0x400000
NPOS  = 216
CLB   = 0x1000000
CL_STRIDE = 0x200000
X0_OFF = 0x00000
LAYER_OFF = 0x10000
LAYER_SZ  = 0x90000
O_OFF, XP_OFF, H_OFF, X1_OFF, X2_OFF, H2_OFF = 0x00000, 0x10000, 0x20000, 0x30000, 0x40000, 0x50000
WS_BYTES = 268435456
P_KV, P_Q, P_WO, P_W1, P_W2, P_W3, P_W4 = 0, 32, 48, 64, 80, 96, 160
SENT = 0xFFFFFFFF
KNAME = "interleave_layers__linear_attn_block__mixer_s_mlp__prompt_kernel"
TB0_OFF = X0_OFF
TB1_OFF = 0x1C0000
H2F_OFF = 0x180000
```

```python
from asmlib import *
from layout import *
from collections import deque
import struct, json, sys

LDS_BYTES = 135168
L_STAT, L_STAT2 = 131072, 132096
H2S = [65536, 98304, 0, 32768]
L_YX = 98304
HSTRIDE = 1280

S_WS = "s[4:7]"; S_X = "s[12:15]"; S_OUT = "s[16:19]"
sC, sJ, sW, sMODE, sCL, sWPOS = "s20", "s21", "s22", "s23", "s24", "s25"
sT0, sT1, sT2, sT3, sT4, sT5 = "s26", "s27", "s28", "s29", "s30", "s31"
sCNT = "s32"; sFLG = "s33"; sWBASE = "s34"; sXCC = "s35"; sU = "s36"; sX8 = "s37"
sM1, sM2, sM3, sDIAG = "s[40:41]", "s[42:43]", "s[44:45]", "s[46:47]"
sHM = ["s[48:49]", "s[50:51]"]
sPM_T, sPM_ALL = "s[52:53]", "s[54:55]"
sLOG2E, sEPS6, sINV512, sEPS5 = "s58", "s59", "s60", "s61"
sHALO_ST, sHALO_LD, sKV1, sKV2W, sKV2R = "s62", "s63", "s64", "s65", "s66"
sXA = "s67"
sMYFLG = "s68"
sSTO = "s69"
sAT = "s72"; sM0 = "s73"
sFA = "s74"; sSB = "s75"; sH2R = "s38"; sLIM = "s39"; sKH = "s56"
vLANE, vL16, vL4 = 1, 2, 3
vTA = [4, 5, 6, 7]; vTH = [8, 9, 10, 11]; vST = [12, 13]; vSA = [14, 15, 16, 17]; vSB = [18, 19, 20, 21]
vHO = [22, 23]
vONES = 24
vID = 28
vC0, vC1 = 28, 29
vK = 30
X, XN, PQ = 32, 48, 64
CQ, CK, CV, C1, C3 = 72, 76, 80, 84, 88
ACC = 104
TMP = 176
vTB = [244, 245, 246, 247]
vTX, vSAX, vSTH = 237, 238, 239
vPROF = 240
vDUM = 250
vXA = 252; vZERO = 253; vONE = 254; vXC = 255
vB = [TMP + 12, TMP + 28, TMP + 44]
aF = 0; NSLOT = 64
SPIN_LIMIT = 400000
PROF_OFF = 0xC00000

def f2u(x): return struct.unpack("<I", struct.pack("<f", x))[0]

class Main:
    def __init__(self, stop=99, nlayers=2):
        self.k = K(); self.stop = int(stop); self.nlayers = int(nlayers)
        self.prof = False; self.marks = []; self.uniq = False; self.force_slow = False
        self.total_pos = NPOS * self.nlayers
        self.next_load = 0; self.consumed = 0; self.known = -1
        self.fill = deque(); self.vq = deque(); self.rdq = deque(); self.lmarks = []; self.fine = False; self.verbose = False
        self.budget = 2; self.clk = 0; self.last_vm = -1000; self.auto = True; self.allow_w = True; self.GAP = 62
        self.wlog = None
    def mark(self, name):
        if self.verbose: print(f"  [{name}] lookahead {self.next_load - self.consumed} clk {self.clk}", file=sys.stderr)
        if not self.prof: return
        k = self.k
        k.e("s_memtime s[70:71]"); k.e("s_waitcnt lgkmcnt(0)"); k.lg = []
        for (nm, reg) in self.lmarks:
            i = len(self.marks); self.marks.append(nm)
            k.e(f"v_writelane_b32 v{vPROF + i // 64}, s{reg}, {i % 64}")
        self.lmarks = []
        i = len(self.marks); self.marks.append(name)
        k.e(f"v_writelane_b32 v{vPROF + i // 64}, s70, {i % 64}")
    def lmark(self, name):
        if not self.prof or not self.fine: return
        reg = 76 + 2 * len(self.lmarks)
        if reg > 100: return
        self.k.e(f"s_memtime s[{reg}:{reg+1}]")
        self.lmarks.append((name, reg))
    def wslot(self, P): return aF + 4 * (P % NSLOT)
    def is_null(self, P): return False
    def wload_next(self):
        k = self.k; P = self.next_load
        self.next_load += 1
        mp = P % NPOS
        if mp % 4 == 0 and P > 0:
            if mp == 0: k.e(f"s_mov_b32 {sWPOS}, {sWBASE}")
            else: k.e(f"s_add_u32 {sWPOS}, {sWPOS}, 4096")
        ins = f"buffer_load_dwordx4 {ar(self.wslot(P), 4)}, v{vL16}, {S_WS}, {sWPOS} offen offset:{(mp % 4) * 1024}"
        if self.is_null(P):
            lab = k.newlab("WN")
            k.e(f"s_cmp_ge_u32 {sW}, 2"); k.e(f"s_cbranch_scc1 {lab}")
            c0 = k.cond; k.cond = True; k.vmem(ins, ("W", P)); k.cond = c0
            k.lab(lab)
        else:
            k.vmem(ins, ("W", P))
    def can_refill(self): return self.next_load < min(self.consumed + NSLOT, self.total_pos)
    def wtarget(self, P):
        if self.next_load <= P + 3 and self.verbose and P + 4 < self.total_pos: print(f"    JIT/low at P={P} (mp {P % NPOS}) next_load {self.next_load}", file=sys.stderr)
        while self.next_load <= P: self.wload_next()
        if P <= self.known: return None
        P2 = max(P, min(P + 7, self.next_load - 14))
        self.known = P2
        return ("W", P2)
    def wuse(self, P):
        t = self.wtarget(P)
        if t: self.k.wait(vm=t)
        return ar(self.wslot(P), 4)
    def wdone(self, P): self.consumed = max(self.consumed, P + 1)
    def refill(self, n):
        for _ in range(n):
            if self.can_refill(): self.wload_next(); self.clk += 60; self.last_vm = self.clk
    def vslot(self, n=1):
        return
    def tick(self, cost):
        self.clk += cost
        if self.auto and self.clk - self.last_vm >= self.GAP:
            low = self.next_load - self.consumed < 10
            if self.vq and not (low and self.can_refill()): self.vq.popleft()(); self.last_vm = self.clk
            elif (self.allow_w or low) and self.can_refill(): self.wload_next(); self.last_vm = self.clk
    def ev(self, text):
        self.k.e(text)
        mn = text.split()[0]
        self.tick(8.5 if mn.startswith(("v_exp", "v_rcp", "v_rsq")) else 4.5)
    def pump(self, budget):
        used = 0
        while self.fill and self.fill[0][0] <= budget:
            cost, f = self.fill.popleft(); f(); budget -= cost; used += cost
        return used
    def add(self, text, cost=1): self.fill.append((cost, lambda t=text: self.k.e(t)))
    def addf(self, f, cost=1): self.fill.append((cost, f))
    def flush(self):
        while self.fill:
            c, f = self.fill.popleft(); f(); self.tick(4 * c)
    def poll(self, mask, phase):
        k = self.k; L = k.newlab("PL"); D = k.newlab("PD")
        k.e(f"s_add_u32 {sFA}, {sFLG}, {phase * 128}")
        k.e(f"s_mov_b64 exec, {mask}")
        k.e(f"s_mov_b32 {sCNT}, 0")
        k.lab(L)
        k.e(f"buffer_load_dword v{vDUM}, v{vL4}, {S_WS}, {sFA} offen sc1")
        k.e("s_waitcnt vmcnt(0)")
        k.e(f"v_cmp_eq_u32 vcc, 0, v{vDUM}")
        k.e(f"s_cbranch_vccz {D}")
        k.e(f"s_add_u32 {sCNT}, {sCNT}, 1")
        k.e(f"s_cmp_lt_u32 {sCNT}, {SPIN_LIMIT}")
        k.e(f"s_cbranch_scc1 {L}")
        k.lab(D)
        k.e("s_mov_b64 exec, -1")
        k.vm = []
    def signal(self, phase, nref=0, pre=2):
        k = self.k
        k.e(f"s_add_u32 {sFA}, {sMYFLG}, {phase * 128}")
        self.refill(pre)
        k.wait(vm="XS")
        k.e("s_mov_b64 exec, 1")
        self.xblock([f"buffer_store_dword v{vONE}, off, {S_WS}, {sFA}"], "FL")
        k.e("s_mov_b64 exec, -1")
        self.refill(nref); self.allow_w = True
    def xblock(self, stores, tag):
        k = self.k; slow = k.newlab("XS"); done = k.newlab("XD")
        k.e(f"s_cmp_eq_u32 {sMODE}, 0"); k.e(f"s_cbranch_scc1 {slow}")
        for s in stores: k.e(s)
        k.e(f"s_branch {done}")
        k.lab(slow)
        for s in stores: k.e(s + " sc1")
        k.lab(done)
        for s in stores: k.vm.append((tag, k.cond))
    def bufsel(self, dst, buf):
        k = self.k; u, f = buf
        if u == f: k.e(f"s_add_u32 {dst}, {sCL}, {u}")
        else:
            k.e(f"s_mov_b32 {dst}, {f}"); k.e(f"s_cmp_eq_u32 {sMODE}, 0"); k.e(f"s_cselect_b32 {dst}, {u}, {dst}"); k.e(f"s_add_u32 {dst}, {dst}, {sCL}")
    def tbuf(self, L, which):
        lb = LAYER_OFF + L*LAYER_SZ
        if which == "H2":
            return (lb + H2_OFF, lb + H2_OFF if self.uniq else H2F_OFF)
        idx = {"O": 0, "XP": 1, "H": 2, "X1": 3, "X2": 4}[which]
        uniq = lb + {"O": O_OFF, "XP": XP_OFF, "H": H_OFF, "X1": X1_OFF, "X2": X2_OFF}[which]
        seq = 1 + 5*L + idx
        fast = TB0_OFF if seq % 2 == 0 else TB1_OFF
        return (uniq, uniq if self.uniq else fast)
    def queue_atile(self, buf, hl=False):
        k = self.k
        assert not self.vq
        self.dma_issued = 0
        self.bufsel(sAT, buf)
        k.e(f"s_lshl_b32 {sT0}, {sW}, 12"); k.e(f"s_add_u32 {sAT}, {sAT}, {sT0}")
        if hl: k.e(f"s_mul_i32 {sM0}, {sW}, {4*HSTRIDE}"); k.e(f"s_add_u32 {sM0}, {sM0}, 32")
        else: k.e(f"s_mov_b32 {sM0}, {sT0}")
        for c in range(4):
            for i in range(4):
                def f(c=c, i=i):
                    if i == 0 and c > 0: k.e(f"s_add_u32 {sAT}, {sAT}, 16384")
                    if hl: k.e(f"s_add_u32 m0, {sM0}, {c*16*HSTRIDE + i*HSTRIDE - i*1024}")
                    elif i == 0: k.e(f"s_add_u32 m0, {sM0}, {c*16384}")
                    k.vmem(f"buffer_load_dwordx4 v{vL16}, {S_WS}, {sAT} offen offset:{i*1024} sc1 lds", ("AT", c))
                    self.dma_issued += 1
                self.vq.append(f)
    def kloop(self, nsteps, off_fn, body, chunk=None, hooks=None, min_step=70, wmax=None, extra=None):
        k = self.k
        def rd(s2, t):
            if t < 4:
                vreg, off = off_fn(t, s2)
                k.ds(f"ds_read_b128 {vr(vB[s2 % 3] + 4 * t, 4)}, v{vreg} offset:{off}", ("B", s2))
            else:
                _, off = off_fn(0, s2)
                k.ds(f"ds_read_b128 {vr(extra[1] + 4 * (s2 % 3), 4)}, v{extra[0]} offset:{off}", ("B", s2))
        nt = 5 if extra else 4
        for s in range(min(2, nsteps)):
            if chunk: chunk(s)
            for t in range(nt): rd(s, t)
        for s in range(nsteps):
            if hooks and s in hooks: hooks[s]()
            if s + 2 < nsteps:
                if chunk: chunk(s + 2)
                for t in range(nt): self.rdq.append(lambda t=t, s2=s+2: rd(s2, t))
            k.wait(vm=self.wtarget(wmax(s)) if wmax else None, lg=("B", s))
            T = [vr(vB[s % 3] + 4 * t, 4) for t in range(4)]
            if extra: T.append(vr(extra[1] + 4 * (s % 3), 4))
            c0 = self.clk
            body(s, T)
            while self.rdq: self.rdq.popleft()()
            if self.clk < c0 + min_step:
                self.clk = c0 + min_step; self.tick(0)
    def at_chunk(self, s):
        if s % 4: return
        c = s // 4
        while self.dma_issued < 4 * (c + 1): self.vq.popleft()()
        self.k.wait(vm=("AT", c)); self.k.barrier(); self.lmark(f" .barrier c{c}")
    def start_atile(self, n=8):
        for _ in range(n): self.vq.popleft()(); self.clk += 60; self.last_vm = self.clk
    def mfma(self, d, a, b, c=None, k16=False, pump=None):
        if pump is None: pump = self.budget
        op = "v_mfma_f32_16x16x16_bf16" if k16 else "v_mfma_f32_16x16x32_bf16"
        D = d if isinstance(d, str) else vr(d, 4)
        C = D if c is None else (c if isinstance(c, str) else vr(c, 4))
        self.k.e(f"{op} {D}, {a}, {b}, {C}")
        used = 0
        if self.rdq: self.rdq.popleft()(); used = 1; pump -= 1
        used += self.pump(pump) if pump > 0 else 0
        self.tick(max(16, 8 + 4 * used))
    def pack(self, src, P, emit):
        for t in range(4):
            emit(f"v_cvt_pk_bf16_f32 v{P + 2*t}, v{src + 4*t}, v{src + 4*t + 1}")
            emit(f"v_cvt_pk_bf16_f32 v{P + 2*t + 1}, v{src + 4*t + 2}, v{src + 4*t + 3}")
        for p in range(2):
            emit(f"v_permlane16_swap_b32 v{P + 4*p}, v{P + 4*p + 2}")
            emit(f"v_permlane16_swap_b32 v{P + 4*p + 1}, v{P + 4*p + 3}")
    def store_T(self, P, buf, row_imm=0, srow=None):
        k = self.k
        self.bufsel(sT1, buf)
        k.e(f"s_add_u32 {sT0}, {sT1}, {srow or sSTO}")
        if row_imm: k.e(f"s_add_u32 {sT0}, {sT0}, {row_imm}")
        self.xblock([f"buffer_store_dwordx4 {vr(P + 4*p, 4)}, v{vST[p]}, {S_WS}, {sT0} offen" for p in range(2)], "XS")
    def stats_items(self, S1, G, double, emit):
        k = self.k; t = TMP + 48
        emit(f"v_cndmask_b32_e64 v{t}, v{G}, v{G+1}, {sM1}")
        emit(f"v_mul_f32 v{t+1}, {sINV512}, v{S1}")
        emit(f"v_cndmask_b32_e64 v{t}, v{t}, v{G+2}, {sM2}")
        emit(f"v_cndmask_b32_e64 v{t}, v{t}, v{G+3}, {sM3}")
        emit(f"v_mul_f32 v{t}, {sINV512}, v{t}")
        emit(f"v_fma_f32 v{t}, -v{t+1}, v{t+1}, v{t}")
        emit(f"v_max_f32 v{t}, 0, v{t}")
        emit(f"v_add_f32 v{t+2}, {sEPS5}, v{t}")
        emit(f"v_rsq_f32 v{t+6}, v{t+2}")
        emit(f"v_subrev_u32 v{t+8}, {L_STAT}, v{vSA[0]}")
        emit(f"v_mul_f32 v{t+7}, v{t+6}, v{t+1}")
        emit(f"v_lshrrev_b32 v{t+8}, 2, v{t+8}")
        emit(f"v_add_u32 v{t+8}, {L_STAT2}, v{t+8}")
        if double:
            emit(f"v_mul_f32 v{t+3}, v{t+6}, v{t+6}")
            emit(f"v_mul_f32 v{t+3}, v{t+3}, v{t}")
            emit(f"v_add_f32 v{t+3}, {sEPS5}, v{t+3}")
            emit(f"v_rsq_f32 v{t+3}, v{t+3}")
            emit(f"v_mul_f32 v{t+4}, v{t+6}, v{t+3}")
            emit(f"v_mul_f32 v{t+5}, v{t+7}, v{t+3}")
        else:
            emit(f"v_mov_b32 v{t+4}, v{t+6}")
            emit(f"v_mov_b32 v{t+5}, v{t+7}")
    def stats_write(self, soa):
        k = self.k; t = TMP + 48
        k.e(f"s_mov_b64 exec, {sDIAG}")
        k.ds(f"ds_write_b128 v{vSA[0]}, {vr(t+4, 4)}", "SW")
        if soa:
            k.ds(f"ds_write_b32 v{t+8}, v{t+4}", "SW")
            k.ds(f"ds_write_b32 v{t+8}, v{t+5} offset:256", "SW")
        k.e("s_mov_b64 exec, -1")
        k.wait(lg="SW")
        k.barrier()
    def offA(self, t, s): return vTA[t], s * 4096
    def ln_pk(self, acc, c, ST, emit):
        u = TMP + 48
        for t in range(4):
            for h in range(2):
                emit(f"v_pk_mul_f32 {vr(u+2*h, 2)}, {vr(c+2*h, 2)}, {vr(ST+4*t, 2)} op_sel:[0,1] op_sel_hi:[1,1]")
            for h in range(2):
                emit(f"v_pk_fma_f32 {vr(acc+4*t+2*h, 2)}, {vr(acc+4*t+2*h, 2)}, {vr(ST+4*t, 2)}, {vr(u+2*h, 2)} op_sel_hi:[1,0,1] neg_lo:[0,0,1] neg_hi:[0,0,1]")
    def gelu_pk(self, base, n, emit):
        u = TMP + 48
        for i in range(0, n, 4):
            r = base + i
            for h in range(2): emit(f"v_pk_mul_f32 {vr(u+2*h, 2)}, {vr(r+2*h, 2)}, {vr(r+2*h, 2)}")
            for h in range(2): emit(f"v_pk_fma_f32 {vr(u+2*h, 2)}, {vr(u+2*h, 2)}, {vr(vC0, 2)}, {vr(vC0, 2)} op_sel:[0,1,0] op_sel_hi:[1,1,0]")
            for h in range(2): emit(f"v_pk_mul_f32 {vr(u+2*h, 2)}, {vr(u+2*h, 2)}, {vr(r+2*h, 2)}")
            for n_ in range(4): emit(f"v_exp_f32 v{u+n_}, v{u+n_}")
            for h in range(2): emit(f"v_pk_add_f32 {vr(u+2*h, 2)}, {vr(u+2*h, 2)}, 1.0 op_sel_hi:[1,0]")
            for n_ in range(4): emit(f"v_rcp_f32 v{u+n_}, v{u+n_}")
            for h in range(2): emit(f"v_pk_mul_f32 {vr(r+2*h, 2)}, {vr(r+2*h, 2)}, {vr(u+2*h, 2)}")
    def phi_pk(self, base, n, emit):
        u = TMP + 48
        for i in range(0, n, 4):
            r = base + i
            for h in range(2): emit(f"v_pk_mul_f32 {vr(u+2*h, 2)}, {vr(r+2*h, 2)}, {vr(vK, 2)} op_sel_hi:[1,0]")
            for n_ in range(4): emit(f"v_exp_f32_e64 v{u+n_}, v{u+n_} clamp")
            for n_ in range(4): emit(f"v_max_f32 v{r+n_}, 0, v{r+n_}")
            for h in range(2): emit(f"v_pk_add_f32 {vr(u+2*h, 2)}, {vr(u+2*h, 2)}, {vr(vK, 2)} op_sel:[0,1] op_sel_hi:[1,1]")
            for h in range(2): emit(f"v_pk_add_f32 {vr(r+2*h, 2)}, {vr(r+2*h, 2)}, {vr(u+2*h, 2)}")
    def ln_gelu_items(self, acc, c, ST):
        u = TMP + 52
        for t in range(4):
            for r in range(4): self.add(f"v_mul_f32 v{u+r}, v{ST+4*t+1}, v{c+r}")
            for r in range(4): self.add(f"v_fma_f32 v{acc+4*t+r}, v{ST+4*t}, v{acc+4*t+r}, -v{u+r}")
            g = [acc+4*t+r for r in range(4)]
            for n, r in enumerate(g): self.add(f"v_mul_f32 v{u+n}, v{r}, v{r}")
            for n, r in enumerate(g): self.add(f"v_fma_f32 v{u+n}, v{u+n}, v{vC1}, v{vC0}")
            for n, r in enumerate(g): self.add(f"v_mul_f32 v{u+n}, v{u+n}, v{r}")
            for n, r in enumerate(g): self.add(f"v_exp_f32 v{u+n}, v{u+n}", 2)
            for n, r in enumerate(g): self.add(f"v_add_f32 v{u+n}, 1.0, v{u+n}")
            for n, r in enumerate(g): self.add(f"v_rcp_f32 v{u+n}, v{u+n}", 2)
            for n, r in enumerate(g): self.add(f"v_mul_f32 v{r}, v{r}, v{u+n}")
    def read_stats_T(self, dst):
        k = self.k
        for t in range(4): k.ds(f"ds_read_b128 {vr(dst+4*t, 4)}, v{vSA[t]}", "SR")
    def poll_data(self, loads, regs, after=None):
        k = self.k; L = k.newlab("KP"); D = k.newlab("KD")
        k.e(f"s_mov_b32 {sCNT}, 0")
        k.lab(L)
        for x in loads: k.e(x)
        k.e("s_waitcnt vmcnt(0)")
        m = vDUM
        regs = list(regs)
        k.e(f"v_max_u32 v{m}, v{regs[0]}, v{regs[1]}")
        rest = regs[2:]
        while len(rest) >= 2:
            k.e(f"v_max3_u32 v{m}, v{m}, v{rest[0]}, v{rest[1]}"); rest = rest[2:]
        if rest: k.e(f"v_max_u32 v{m}, v{m}, v{rest[0]}")
        k.e(f"v_cmp_eq_u32 vcc, -1, v{m}")
        k.e(f"s_cbranch_vccz {D}")
        k.e(f"s_add_u32 {sCNT}, {sCNT}, 1"); k.e(f"s_cmp_lt_u32 {sCNT}, {SPIN_LIMIT}"); k.e(f"s_cbranch_scc1 {L}")
        k.lab(D)
        k.vm = []
    def prologue(self):
        k = self.k; e = k.e
        e("s_cmp_ge_u32 s2, 256"); e("s_cbranch_scc1 M_done")
        e("s_load_dwordx2 s[8:9], s[0:1], 0"); e("s_load_dwordx2 s[10:11], s[0:1], 64"); e("s_load_dwordx2 s[38:39], s[0:1], 80")
        e(f"v_and_b32 v{vLANE}, 63, v0"); e("v_lshrrev_b32 v2, 6, v0"); e("s_nop 0"); e(f"v_readfirstlane_b32 {sW}, v2")
        e(f"s_and_b32 {sX8}, s2, 7"); e(f"s_lshr_b32 {sT0}, s2, 3")
        e(f"s_lshr_b32 {sU}, {sT0}, 3"); e(f"s_and_b32 {sJ}, {sT0}, 7")
        e(f"s_lshl_b32 {sC}, {sX8}, 2"); e(f"s_add_u32 {sC}, {sC}, {sU}")
        e(f"v_lshlrev_b32 v{vL16}, 4, v{vLANE}"); e(f"v_lshlrev_b32 v{vL4}, 2, v{vLANE}")
        e(f"s_lshl_b32 {sCL}, {sC}, 21"); e(f"s_add_u32 {sCL}, {sCL}, {CLB}")
        e(f"s_lshl_b32 {sT0}, {sJ}, 2"); e(f"s_add_u32 {sT0}, {sT0}, {sW}"); e(f"s_mul_i32 {sWBASE}, {sT0}, {NPOS * 1024}")
        e(f"s_add_u32 {sWBASE}, {sWBASE}, {WSH}"); e(f"s_mov_b32 {sWPOS}, {sWBASE}")
        e("s_waitcnt lgkmcnt(0)")
        e("s_mov_b32 s4, s38"); e("s_mov_b32 s5, s39"); e(f"s_mov_b32 s6, {WS_BYTES}"); e("s_mov_b32 s7, 0x00020000")
        self.mark("start")
        self.queue_atile((X0_OFF, X0_OFF))
        self.start_atile(4)
        for _ in range(4): self.wload_next()
        self.start_atile(4)
        for _ in range(4): self.wload_next()
        e("s_mov_b32 s12, s8"); e("s_mov_b32 s13, s9"); e(f"s_mov_b32 s14, {2048*1024}"); e("s_mov_b32 s15, 0x00020000")
        e("s_mov_b32 s16, s10"); e("s_mov_b32 s17, s11"); e(f"s_mov_b32 s18, {2048*1024}"); e("s_mov_b32 s19, 0x00020000")
        e(f"s_getreg_b32 {sXCC}, hwreg(HW_REG_XCC_ID)"); e(f"s_and_b32 {sXCC}, {sXCC}, 15"); e(f"s_add_u32 {sXCC}, {sXCC}, 1")
        e(f"v_mov_b32 v{vONE}, 1"); e(f"v_mov_b32 v{vZERO}, 0")
        lab = k.newlab("NX")
        e(f"s_cmp_lg_u32 {sW}, 0"); e(f"s_cbranch_scc1 {lab}")
        e(f"s_lshl_b32 {sT0}, s2, 2"); e(f"s_add_u32 {sT0}, {sT0}, {XCC}")
        e(f"v_mov_b32 v{TMP}, {sXCC}")
        e("s_mov_b64 exec, 1")
        k.cond = True; k.vmem(f"buffer_store_dword v{TMP}, off, {S_WS}, {sT0} sc1", "XCCP"); k.cond = False
        e("s_mov_b64 exec, -1")
        k.lab(lab)
        e(f"s_mul_i32 {sH2R}, {sJ}, {28*1024}")
        e(f"s_lshl_b32 {sFLG}, {sC}, 11")
        e(f"s_lshl_b32 {sT1}, {sJ}, 4"); e(f"s_lshl_b32 {sT2}, {sW}, 2"); e(f"s_add_u32 {sT1}, {sT1}, {sT2}"); e(f"s_add_u32 {sMYFLG}, {sT1}, {sFLG}")
        e(f"s_lshl_b32 {sSTO}, {sJ}, 13"); e(f"s_lshl_b32 {sT1}, {sW}, 11"); e(f"s_add_u32 {sSTO}, {sSTO}, {sT1}")
        T = TMP + 20
        e(f"v_and_b32 v{T}, 15, v{vLANE}")
        e(f"v_lshrrev_b32 v{T+1}, 4, v{vLANE}")
        for t in range(4):
            e(f"s_add_u32 {sT0}, {sW}, {t}"); e(f"s_and_b32 {sT0}, {sT0}, 3")
            e(f"s_lshl_b32 {sT1}, {sT0}, 8")
            e(f"v_lshlrev_b32 v{T+2}, 10, v{T+1}"); e(f"v_lshlrev_b32 v{T+3}, 4, v{T}")
            e(f"v_add3_u32 v{vTA[t]}, v{T+2}, v{T+3}, {sT1}")
            e(f"v_mul_u32_u24 v{T+2}, {HSTRIDE}, v{T+1}")
            e(f"v_add3_u32 v{vTH[t]}, v{T+2}, v{T+3}, {sT1}")
            e(f"s_add_u32 {sT2}, {sT1}, {L_STAT}"); e(f"v_add_u32 v{vSA[t]}, {sT2}, v{T+3}")
            e(f"s_lshl_b32 {sT2}, {sT0}, 6"); e(f"s_add_u32 {sT2}, {sT2}, {L_STAT2}"); e(f"v_lshlrev_b32 v{T+2}, 4, v{T+1}"); e(f"v_add_u32 v{vSB[t]}, {sT2}, v{T+2}")
            e(f"s_lshl_b32 {sT2}, {sT0}, 14"); e(f"v_lshlrev_b32 v{T+2}, 10, v{T}"); e(f"v_lshlrev_b32 v{T+3}, 3, v{T+1}")
            e(f"v_add3_u32 v{T+4+t}, v{T+2}, v{T+3}, {sT2}")
        e(f"s_lshl_b32 {sT0}, {sC}, 16"); e(f"s_lshl_b32 {sT1}, {sJ}, 7"); e(f"s_add_u32 {sT0}, {sT0}, {sT1}")
        e(f"s_lshl_b32 {sT1}, {sW}, 5"); e(f"s_add_u32 {sT0}, {sT0}, {sT1}")
        for t in range(4):
            k.vmem(f"buffer_load_dwordx2 {vr(TMP+8+2*t, 2)}, v{T+4+t}, {S_X}, {sT0} offen", "XR")
        e(f"v_and_b32 v{T+2}, 1, v{T+1}"); e(f"v_add_u32 v{T+2}, {sW}, v{T+2}")
        e(f"v_lshrrev_b32 v{T+3}, 1, v{T+1}"); e(f"v_lshlrev_b32 v{T+3}, 10, v{T+3}")
        e(f"v_lshlrev_b32 v{T+16}, 4, v{T}")
        for p in range(2):
            e(f"v_add_u32 v{T+17}, {2*p}, v{T+2}"); e(f"v_and_b32 v{T+17}, 3, v{T+17}"); e(f"v_lshlrev_b32 v{T+17}, 8, v{T+17}")
            e(f"v_add3_u32 v{vST[p]}, v{T+3}, v{T+16}, v{T+17}")
        e(f"s_and_b32 {sT0}, {sW}, 1"); e(f"s_lshl_b32 {sT0}, {sT0}, 1"); e(f"s_add_u32 {sT0}, {sT0}, {sW}"); e(f"s_and_b32 {sT0}, {sT0}, 3"); e(f"s_lshl_b32 {sT0}, {sT0}, 8")
        e(f"s_add_u32 {sT1}, {sW}, 1"); e(f"s_and_b32 {sT1}, {sT1}, 3"); e(f"s_lshl_b32 {sT1}, {sT1}, 8")
        e(f"v_lshlrev_b32 v{T+17}, 10, v{T+1}"); e(f"v_add3_u32 v{vTX}, v{T+17}, v{T+16}, {sT0}")
        e(f"s_add_u32 {sT2}, {sT0}, {L_STAT}"); e(f"v_add_u32 v{vSAX}, {sT2}, v{T+16}")
        e(f"v_and_b32 v{T+17}, 1, v{T+1}"); e(f"v_cmp_eq_u32 vcc, 1, v{T+17}"); e(f"v_mov_b32 v{T+17}, {sT0}"); e(f"v_mov_b32 v{T+18}, {sT1}")
        e(f"v_cndmask_b32 v{T+17}, v{T+17}, v{T+18}, vcc"); e(f"v_add3_u32 v{vSTH}, v{T+3}, v{T+16}, v{T+17}")
        e(f"s_and_b32 {sT0}, {sJ}, 2")
        e(f"s_lshl_b32 {sT1}, {sJ}, 3"); e(f"s_lshl_b32 {sT2}, {sW}, 1"); e(f"s_add_u32 {sT1}, {sT1}, {sT2}"); e(f"s_lshl_b32 {sT1}, {sT1}, 5")
        for p in range(2):
            e(f"v_and_b32 v{T+17}, 1023, v{vST[p]}"); e(f"v_lshrrev_b32 v{T+17}, 4, v{T+17}")
            e(f"v_lshrrev_b32 v{T+18}, 10, v{vST[p]}"); e(f"v_lshlrev_b32 v{T+18}, 5, v{T+18}")
            l1 = k.newlab("HL"); l2 = k.newlab("HL")
            e(f"s_cmp_eq_u32 {sT0}, 0"); e(f"s_cbranch_scc0 {l1}")
            e(f"v_cmp_le_u32 {sHM[p]}, 62, v{T+17}"); e(f"v_subrev_u32 v{T+17}, 62, v{T+17}")
            e(f"s_branch {l2}")
            k.lab(l1)
            e(f"v_cmp_gt_u32 {sHM[p]}, 2, v{T+17}")
            k.lab(l2)
            e(f"v_lshlrev_b32 v{T+17}, 4, v{T+17}")
            e(f"v_add3_u32 v{vHO[p]}, v{T+17}, v{T+18}, {sT1}")
        e(f"s_add_u32 {sT1}, {sC}, 2"); e(f"s_cmp_eq_u32 {sT0}, 0"); e(f"s_cselect_b32 {sT1}, {sT1}, {sC}")
        e(f"s_lshl_b32 {sHALO_ST}, {sT1}, 11"); e(f"s_add_u32 {sHALO_ST}, {sHALO_ST}, {HALO}")
        e(f"s_add_u32 {sT1}, {sC}, 1"); e(f"s_lshl_b32 {sHALO_LD}, {sT1}, 11"); e(f"s_add_u32 {sHALO_LD}, {sHALO_LD}, {HALO}")
        e(f"s_lshl_b32 {sT0}, {sX8}, 3"); e(f"s_add_u32 {sT0}, {sT0}, {sJ}"); e(f"s_lshl_b32 {sT0}, {sT0}, 2"); e(f"s_add_u32 {sT0}, {sT0}, {sW}")
        e(f"s_mul_i32 {sKV1}, {sT0}, {4*1280}"); e(f"s_add_u32 {sKV1}, {sKV1}, {KV1}")
        e(f"s_lshl_b32 {sT0}, {sJ}, 2"); e(f"s_add_u32 {sT0}, {sT0}, {sW}"); e(f"s_lshl_b32 {sKV2R}, {sT0}, 13"); e(f"s_add_u32 {sKV2R}, {sKV2R}, {KV2}")
        e(f"s_lshl_b32 {sT0}, {sX8}, 10"); e(f"s_add_u32 {sKV2W}, {sKV2R}, {sT0}")
        e("s_mov_b32 s40, 0x22222222"); e("s_mov_b32 s41, 0x22222222"); e("s_mov_b32 s42, 0x44444444"); e("s_mov_b32 s43, 0x44444444")
        e("s_mov_b32 s44, 0x88888888"); e("s_mov_b32 s45, 0x88888888"); e("s_mov_b32 s46, 0x00f0000f"); e("s_mov_b32 s47, 0xf0000f00")
        e(f"s_lshr_b32 {sT0}, {sW}, 1"); e(f"s_lshl_b32 {sT0}, {sT0}, 2"); e(f"s_lshl_b32 s52, 0x0f0f0f0f, {sT0}"); e("s_mov_b32 s53, 0")
        e("s_mov_b32 s54, -1"); e("s_mov_b32 s55, 0")
        e(f"s_mov_b32 {sEPS6}, 0x358637bd"); e(f"s_mov_b32 {sINV512}, 0x3b000000"); e(f"s_mov_b32 {sEPS5}, 0x3727c5ac")
        for i in range(4): e(f"v_mov_b32 v{vONES+i}, 0x3f803f80")
        c0 = -2.0 * 0.7978845608028654 * 1.4426950408889634
        e(f"v_mov_b32 v{vC0}, {f2u(c0):#x}"); e(f"v_mov_b32 v{vC1}, {f2u(c0 * 0.044715):#x}")
        e(f"v_mov_b32 v{vK}, 0x3fb8aa3b"); e(f"v_mov_b32 v{vK+1}, 0x358637bd")
        e(f"v_lshlrev_b32 v{vXA}, 5, v{vLANE}"); e(f"s_lshl_b32 {sT0}, {sX8}, 2"); e(f"s_add_u32 {sXA}, {sT0}, {XCC}")
        e(f"v_lshlrev_b32 v{vDUM+1}, 7, v{vLANE}")
        k.wait(vm="XR")
        for t in range(4):
            e(f"v_lshlrev_b32 v{X+4*t}, 16, v{TMP+8+2*t}"); e(f"v_and_b32 v{X+4*t+1}, 0xffff0000, v{TMP+8+2*t}")
            e(f"v_lshlrev_b32 v{X+4*t+2}, 16, v{TMP+9+2*t}"); e(f"v_and_b32 v{X+4*t+3}, 0xffff0000, v{TMP+9+2*t}")
        self.mark("prologue")
    def early_touch(self):
        k = self.k; e = k.e
        e("s_mov_b32 exec_lo, -1"); e("s_mov_b32 exec_hi, 0")
        k.vmem(f"buffer_load_dword v{vXC}, v{vXA}, {S_WS}, {sXA} offen sc1", "XCC")
        e("s_mov_b64 exec, -1")
        if self.uniq: return
        D = vr(XN, 4)
        def t1():
            e(f"s_lshl_b32 {sT0}, {sJ}, 13"); e(f"s_lshl_b32 {sT1}, {sW}, 11"); e(f"s_add_u32 {sT0}, {sT0}, {sT1}")
            e(f"s_add_u32 {sT0}, {sT0}, {sCL}"); e(f"s_add_u32 {sT0}, {sT0}, {TB1_OFF}")
            k.vmem(f"buffer_load_dwordx4 {D}, v{vL16}, {S_WS}, {sT0} offen", "TOUCH")
            k.vmem(f"buffer_load_dwordx4 {D}, v{vL16}, {S_WS}, {sT0} offen offset:1024", "TOUCH")
        def t2():
            e(f"s_and_b32 {sT0}, {sW}, 1"); e(f"s_lshl_b32 {sT0}, {sT0}, 10"); e(f"s_add_u32 {sT0}, {sT0}, {sFLG}")
            k.vmem(f"buffer_load_dwordx4 {D}, v{vL16}, {S_WS}, {sT0} offen", "TOUCH")
        def t3(L):
            def f():
                e(f"s_mul_i32 {sT0}, {sU}, 1280"); e(f"s_add_u32 {sT0}, {sT0}, {sKV1}"); e(f"s_add_u32 {sT0}, {sT0}, {L * 8*8*4*4*1280}")
                k.vmem(f"buffer_load_dwordx4 {D}, v{vL16}, {S_WS}, {sT0} offen", "TOUCH")
                k.vmem(f"buffer_load_dword v{XN}, v{vL4}, {S_WS}, {sT0} offen offset:1024", "TOUCH")
            return f
        for f in (t3(0), t1, t2, t3(1)): self.vq.append(f)
    def touch_h2(self, L, row8, r, half=False, dst=XN):
        if self.uniq: return
        k = self.k; e = k.e
        self.bufsel(sT1, self.tbuf(L, "H2"))
        e(f"s_add_u32 {sT1}, {sT1}, {sH2R}")
        if half:
            e(f"s_lshl_b32 {sT0}, {sW}, 10"); e(f"s_add_u32 {sT1}, {sT1}, {sT0}"); e(f"s_add_u32 {sT1}, {sT1}, {24*1024}")
        else:
            e(f"s_lshl_b32 {sT0}, {sW}, 11"); e(f"s_add_u32 {sT1}, {sT1}, {sT0}"); e(f"s_add_u32 {sT1}, {sT1}, {(2*row8 + r)*1024}")
        k.vmem(f"buffer_load_dwordx4 {vr(dst, 4)}, v{vL16}, {S_WS}, {sT1} offen", "TOUCH")
        self.last_vm = self.clk
    def recv(self, phase, buf, hl=False):
        self.poll(sPM_T, phase)
        self.mark("poll")
        self.queue_atile(buf, hl)
        self.start_atile(12)
    def phase_qkv(self, L):
        k = self.k; e = k.e; base = L * NPOS
        KA, VA, QA, S1, G = ACC, ACC + 16, ACC + 32, ACC + 48, ACC + 52
        ones = vr(vONES, 4)
        k.c(f"==== layer {L} KV pass")
        def body(s, T):
            wk = ar(self.wslot(base + P_KV + 2*s), 4); wv = ar(self.wslot(base + P_KV + 2*s + 1), 4)
            c = "0" if s == 0 else None
            for t in range(4): self.mfma(KA + 4*t, T[t], wk, c)
            self.vslot(1)
            for t in range(4): self.mfma(VA + 4*t, T[t], wv, c)
            self.vslot(1)
            self.mfma(S1, ones, T[0], c); self.mfma(G, T[0], T[0], c)
            if L == 0:
                self.mfma(CK, ones, wk, c); self.mfma(CV, ones, wv, c)
            self.wdone(base + P_KV + 2*s + 1)
            self.vslot(1)
        hooks = {10: self.early_touch} if L == 0 else None
        self.kloop(16, self.offA, body, chunk=self.at_chunk, hooks=hooks, min_step=172, wmax=lambda s: base + P_KV + 2*s + 1)
        self.mark("kv loop")
        self.stats_items(S1, G, False, e); self.stats_write(True)
        SA, SB = TMP, TMP + 16
        for t in range(4):
            k.ds(f"ds_read_b128 {vr(SA+4*t, 4)}, v{vSB[t]}", "SR")
            k.ds(f"ds_read_b128 {vr(SB+4*t, 4)}, v{vSB[t]} offset:256", "SR")
        k.wait(lg="SR")
        u = TMP + 48
        for (A_, creg) in [(KA, CK), (VA, CV)]:
            for t in range(4):
                for h in range(2): self.ev(f"v_pk_mul_f32 {vr(u+2*h, 2)}, {vr(SB+4*t+2*h, 2)}, {vr(creg, 2)} op_sel_hi:[1,0]")
                for h in range(2): self.ev(f"v_pk_fma_f32 {vr(A_+4*t+2*h, 2)}, {vr(SA+4*t+2*h, 2)}, {vr(A_+4*t+2*h, 2)}, {vr(u+2*h, 2)} neg_lo:[0,0,1] neg_hi:[0,0,1]")
        self.phi_pk(KA, 16, self.ev)
        PK, PV = TMP, TMP + 8
        for t in range(4):
            e(f"v_cvt_pk_bf16_f32 v{PK+2*t}, v{KA+4*t}, v{KA+4*t+1}"); e(f"v_cvt_pk_bf16_f32 v{PK+2*t+1}, v{KA+4*t+2}, v{KA+4*t+3}")
            e(f"v_cvt_pk_bf16_f32 v{PV+2*t}, v{VA+4*t}, v{VA+4*t+1}"); e(f"v_cvt_pk_bf16_f32 v{PV+2*t+1}, v{VA+4*t+2}, v{VA+4*t+3}")
        KV, Z = TMP + 16, TMP + 20
        self.mfma(KV, vr(PK, 4), vr(PV, 4), "0"); self.mfma(Z, vr(PK, 4), ones, "0")
        self.mfma(KV, vr(PK+4, 4), vr(PV+4, 4)); self.mfma(Z, vr(PK+4, 4), ones)
        if L == 0:
            k.wait(vm="XCC")
            Lp = k.newlab("XP"); Dn = k.newlab("XQ")
            e("s_mov_b32 exec_lo, -1"); e("s_mov_b32 exec_hi, 0"); e(f"s_mov_b32 {sCNT}, 0")
            k.lab(Lp)
            e(f"v_cmp_eq_u32 vcc, 0, v{vXC}"); e(f"s_cbranch_vccz {Dn}")
            e(f"buffer_load_dword v{vXC}, v{vXA}, {S_WS}, {sXA} offen sc1"); e("s_waitcnt vmcnt(0)")
            e(f"s_add_u32 {sCNT}, {sCNT}, 1"); e(f"s_cmp_lt_u32 {sCNT}, {SPIN_LIMIT}"); e(f"s_cbranch_scc1 {Lp}")
            k.lab(Dn)
            e(f"v_cmp_ne_u32 vcc, {sXCC}, v{vXC}")
            e("s_nop 1")
            e(f"s_cmp_eq_u64 vcc, 0"); e(f"s_cselect_b32 {sMODE}, 1, 0")
            e("s_mov_b64 exec, -1")
            if self.force_slow: e(f"s_mov_b32 {sMODE}, 0")
        e(f"v_cndmask_b32_e64 v{Z}, v{Z}, v{Z+1}, {sM1}"); e(f"v_cndmask_b32_e64 v{Z}, v{Z}, v{Z+2}, {sM2}"); e(f"v_cndmask_b32_e64 v{Z}, v{Z}, v{Z+3}, {sM3}")
        lay1 = L * (8*8*4*4*1280)
        e(f"s_mul_i32 {sT0}, {sU}, 1280"); e(f"s_add_u32 {sT0}, {sT0}, {sKV1}"); e(f"s_add_u32 {sT0}, {sT0}, {lay1}")
        self.xblock([f"buffer_store_dwordx4 {vr(KV, 4)}, v{vL16}, {S_WS}, {sT0} offen",
                     f"buffer_store_dword v{Z}, v{vL4}, {S_WS}, {sT0} offen offset:1024"], "KVS")
        self.mark("kv epi+publish")
        k.c("==== Q pass")
        lay2 = L * (32*8*KV2_ENT)
        LE = ACC
        l1loads = [f"s_add_u32 {sT0}, {sKV1}, {lay1}"]
        for i in range(4):
            l1loads.append(f"buffer_load_dwordx4 {vr(LE+4*i, 4)}, v{vL16}, {S_WS}, {sT0} offen sc1")
            l1loads.append(f"buffer_load_dword v{LE+16+i}, v{vL4}, {S_WS}, {sT0} offen offset:1024 sc1")
            if i < 3: l1loads.append(f"s_add_u32 {sT0}, {sT0}, 1280")
        def level1_early():
            lab = k.newlab("K1")
            e(f"s_cmp_lg_u32 {sU}, {sW}"); e(f"s_cbranch_scc1 {lab}")
            for x in l1loads:
                e(x)
                if x.startswith("buffer"): k.vm.append(("L1E", True))
            k.lab(lab)
        def level1():
            self.mark("q half")
            lab = k.newlab("K2"); ok = k.newlab("K2ok")
            e(f"s_cmp_lg_u32 {sU}, {sW}"); e(f"s_cbranch_scc1 {lab}")
            vm_save = list(k.vm)
            idx = max(i for i, (t, _) in enumerate(k.vm) if t == "L1E")
            n = sum(1 for (t, cnd) in k.vm[idx+1:] if not cnd)
            e(f"s_waitcnt vmcnt({min(n, 63)})")
            m = vDUM; regs = list(range(LE, LE + 20))
            e(f"v_max_u32 v{m}, v{regs[0]}, v{regs[1]}")
            for i in range(2, 20, 2): e(f"v_max3_u32 v{m}, v{m}, v{regs[i]}, v{regs[i+1]}")
            e(f"v_cmp_eq_u32 vcc, -1, v{m}"); e(f"s_cbranch_vccz {ok}")
            self.poll_data(l1loads, range(LE, LE + 20))
            k.lab(ok)
            k.vm = vm_save
            for h in range(2):
                e(f"v_pk_add_f32 {vr(LE+2*h, 2)}, {vr(LE+2*h, 2)}, {vr(LE+4+2*h, 2)}")
                e(f"v_pk_add_f32 {vr(LE+8+2*h, 2)}, {vr(LE+8+2*h, 2)}, {vr(LE+12+2*h, 2)}")
            e(f"v_add_f32 v{LE+16}, v{LE+16}, v{LE+17}"); e(f"v_add_f32 v{LE+18}, v{LE+18}, v{LE+19}")
            for h in range(2): e(f"v_pk_add_f32 {vr(LE+2*h, 2)}, {vr(LE+2*h, 2)}, {vr(LE+8+2*h, 2)}")
            e(f"v_add_f32 v{LE+22}, v{LE+16}, v{LE+18}")
            e(f"v_cvt_pk_bf16_f32 v{LE+20}, v{LE}, v{LE+1}"); e(f"v_cvt_pk_bf16_f32 v{LE+21}, v{LE+2}, v{LE+3}")
            e(f"v_mov_b32 v{LE+23}, 0")
            e(f"s_add_u32 {sT0}, {sKV2W}, {lay2}")
            e(f"buffer_store_dwordx4 {vr(LE+20, 4)}, v{vL16}, {S_WS}, {sT0} offen sc1")
            k.vm.append(("K2S", True))
            k.lab(lab)
            self.mark("kv1 poll")
        def bodyq(s, T):
            wq = ar(self.wslot(base + P_Q + s), 4)
            c = "0" if s == 0 else None
            for t in range(4): self.mfma(QA + 4*t, wq, T[t], c)
            if L == 0: self.mfma(CQ, wq, ones, c)
            self.wdone(base + P_Q + s)
            self.vslot(1)
        self.kloop(16, self.offA, bodyq, hooks={4: level1_early, 9: level1}, min_step=84, wmax=lambda s: base + P_Q + s)
        self.mark("q loop")
        ST = TMP + 24
        self.read_stats_T(ST); k.wait(lg="SR")
        self.ln_pk(QA, CQ, ST, self.ev)
        self.phi_pk(QA, 16, self.ev)
        for t in range(4):
            e(f"v_cvt_pk_bf16_f32 v{PQ+2*t}, v{QA+4*t}, v{QA+4*t+1}"); e(f"v_cvt_pk_bf16_f32 v{PQ+2*t+1}, v{QA+4*t+2}, v{QA+4*t+3}")
        self.refill(4)
        self.mark("q epi")
        loads = [f"s_add_u32 {sT0}, {sKV2R}, {lay2}"]
        for i in range(8):
            if i == 4: loads.append(f"s_add_u32 {sT0}, {sT0}, 4096")
            loads.append(f"buffer_load_dwordx4 {vr(TMP+4*i, 4)}, v{vL16}, {S_WS}, {sT0} offen offset:{(i%4)*1024} sc1")
        self.poll_data(loads, [TMP+4*i+r for i in range(8) for r in range(3)])
        self.mark("kv2 poll")
        self.allow_w = False
        S = TMP + 32
        for i in range(8):
            b = TMP + 4*i
            if i == 0:
                e(f"v_lshlrev_b32 v{S}, 16, v{b}"); e(f"v_and_b32 v{S+1}, 0xffff0000, v{b}")
                e(f"v_lshlrev_b32 v{S+2}, 16, v{b+1}"); e(f"v_and_b32 v{S+3}, 0xffff0000, v{b+1}"); e(f"v_mov_b32 v{S+4}, v{b+2}")
            else:
                e(f"v_lshlrev_b32 v{S+6}, 16, v{b}"); e(f"v_and_b32 v{S+7}, 0xffff0000, v{b}")
                e(f"v_lshlrev_b32 v{S+8}, 16, v{b+1}"); e(f"v_and_b32 v{S+9}, 0xffff0000, v{b+1}")
                e(f"v_pk_add_f32 {vr(S, 2)}, {vr(S, 2)}, {vr(S+6, 2)}"); e(f"v_pk_add_f32 {vr(S+2, 2)}, {vr(S+2, 2)}, {vr(S+8, 2)}")
                e(f"v_add_f32 v{S+4}, v{S+4}, v{b+2}")
        KVb, Zb = TMP + 44, TMP + 46
        for r in range(4): e(f"v_mov_b32_dpp v{TMP+4+r}, v{S+4} quad_perm:[{r},{r},{r},{r}] row_mask:0xf bank_mask:0xf")
        e(f"v_cvt_pk_bf16_f32 v{KVb}, v{S}, v{S+1}"); e(f"v_cvt_pk_bf16_f32 v{KVb+1}, v{S+2}, v{S+3}")
        e(f"v_cvt_pk_bf16_f32 v{Zb}, v{TMP+4}, v{TMP+5}"); e(f"v_cvt_pk_bf16_f32 v{Zb+1}, v{TMP+6}, v{TMP+7}")
        NUM, DEN = ACC, ACC + 16
        for t in range(4): self.mfma(DEN+4*t, vr(Zb, 2), vr(PQ+2*t, 2), "0", k16=True)
        for t in range(4): self.mfma(NUM+4*t, vr(KVb, 2), vr(PQ+2*t, 2), "0", k16=True)
        for t in range(4): e(f"v_add_f32 v{DEN+4*t}, {sEPS6}, v{DEN+4*t}")
        for t in range(4): e(f"v_rcp_f32 v{DEN+4*t}, v{DEN+4*t}")
        for t in range(4):
            for h in range(2): e(f"v_pk_mul_f32 {vr(NUM+4*t+2*h, 2)}, {vr(NUM+4*t+2*h, 2)}, {vr(DEN+4*t, 2)} op_sel_hi:[1,0]")
        self.pack(NUM, TMP, e); self.store_T(TMP, self.tbuf(L, "O"))
        k.barrier()
        self.signal(6*L + 0)
        self.mark("o + signal")
    def phase_wo(self, L):
        k = self.k; base = L * NPOS
        k.c("==== wo")
        self.recv(6*L + 0, self.tbuf(L, "O"))
        def body(s, T):
            w = ar(self.wslot(base + P_WO + s), 4)
            for t in range(4): self.mfma(X + 4*t, w, T[t])
            self.wdone(base + P_WO + s)
            if s == 9: self.allow_w = False
        self.kloop(16, self.offA, body, chunk=self.at_chunk, min_step=76, wmax=lambda s: base + P_WO + s)
        k.barrier()
        self.mark("wo loop")
        self.pack(X, TMP, k.e); self.store_T(TMP, self.tbuf(L, "XP"))
        self.signal(6*L + 1)
        self.mark("wo epi+signal")
    def phase_w1(self, L):
        k = self.k; e = k.e; base = L * NPOS
        k.c("==== w1")
        self.recv(6*L + 1, self.tbuf(L, "XP"))
        HA, S1, G = ACC, ACC + 48, ACC + 52
        ones = vr(vONES, 4)
        def body(s, T):
            w = ar(self.wslot(base + P_W1 + s), 4)
            c = "0" if s == 0 else None
            for t in range(4): self.mfma(HA + 4*t, w, T[t], c)
            self.mfma(S1, ones, T[0], c); self.mfma(G, T[0], T[0], c)
            if L == 0: self.mfma(C1, w, ones, c)
            self.wdone(base + P_W1 + s)
        self.kloop(16, self.offA, body, chunk=self.at_chunk, min_step=104, wmax=lambda s: base + P_W1 + s)
        self.mark("w1 loop")
        self.stats_items(S1, G, True, e); self.stats_write(False)
        ST = TMP + 24
        self.read_stats_T(ST); k.wait(lg="SR")
        self.ln_pk(HA, C1, ST, self.ev)
        self.auto = False
        self.gelu_pk(HA, 16, e)
        self.pack(HA, TMP, e); self.store_T(TMP, self.tbuf(L, "H"))
        for t in range(4):
            for h in range(2):
                e(f"v_pk_fma_f32 {vr(XN+4*t+2*h, 2)}, {vr(X+4*t+2*h, 2)}, {vr(ST+4*t+2, 2)}, {vr(ST+4*t+2, 2)} op_sel:[0,0,1] op_sel_hi:[1,0,1] neg_lo:[0,0,1] neg_hi:[0,0,1]")
        self.signal(6*L + 2, nref=0)
        e(f"s_add_u32 {sT0}, {sHALO_ST}, {L * 34 * 2048}")
        for p in range(2):
            lab = k.newlab("HS")
            e(f"s_mov_b64 exec, {sHM[p]}"); e(f"s_cbranch_execz {lab}")
            k.cond = True; k.vmem(f"buffer_store_dwordx4 {vr(TMP+4*p, 4)}, v{vHO[p]}, {S_WS}, {sT0} offen sc1", "HS"); k.cond = False
            k.lab(lab)
            e("s_mov_b64 exec, -1")
        self.auto = True
        self.mark("w1 epi+signal")
    def phase_w2(self, L):
        k = self.k; e = k.e; base = L * NPOS
        k.c("==== w2")
        self.recv(6*L + 2, self.tbuf(L, "H"), hl=True)
        lab = k.newlab("HW")
        e(f"s_cmp_lg_u32 {sW}, 3"); e(f"s_cbranch_scc1 {lab}")
        e(f"v_lshlrev_b32 v{TMP+8}, 5, v{vLANE}")
        vm_save = list(k.vm)
        self.poll_data([f"s_add_u32 {sT0}, {sHALO_LD}, {L * 34 * 2048}",
                        f"buffer_load_dwordx4 {vr(TMP, 4)}, v{TMP+8}, {S_WS}, {sT0} offen sc1",
                        f"buffer_load_dwordx4 {vr(TMP+4, 4)}, v{TMP+8}, {S_WS}, {sT0} offen offset:16 sc1"], range(TMP, TMP+8))
        k.vm = vm_save
        e(f"v_mul_u32_u24 v{TMP+9}, {HSTRIDE}, v{vLANE}"); e(f"v_bfe_u32 v{TMP+10}, v{vLANE}, 4, 1"); e(f"v_mul_u32_u24 v{TMP+10}, 1056, v{TMP+10}")
        e(f"v_add_u32 v{TMP+9}, v{TMP+9}, v{TMP+10}")
        e(f"ds_write_b128 v{TMP+9}, {vr(TMP, 4)}"); e(f"ds_write_b128 v{TMP+9}, {vr(TMP+4, 4)} offset:16")
        e("s_waitcnt lgkmcnt(0)")
        k.lab(lab)
        delta = [1, -1, 2, -2]
        def offH(t, s): return vTH[t], (s % 8) * 4 * HSTRIDE + 32 - delta[s // 4] * 16
        def bump():
            for t in range(4): e(f"v_add_u32 v{vTH[t]}, {8*4*HSTRIDE}, v{vTH[t]}")
        def body(s, T):
            w = ar(self.wslot(base + P_W2 + s), 4)
            for t in range(4): self.mfma(XN + 4*t, w, T[t])
            self.wdone(base + P_W2 + s)
            if s == 9: self.allow_w = False
        self.kloop(16, offH, body, chunk=self.at_chunk, hooks={6: bump}, min_step=76, wmax=lambda s: base + P_W2 + s)
        for t in range(4): e(f"v_subrev_u32 v{vTH[t]}, {8*4*HSTRIDE}, v{vTH[t]}")
        k.barrier()
        self.mark("w2 loop")
        self.pack(XN, TMP, e); self.store_T(TMP, self.tbuf(L, "X1"))
        for i in range(0, 16, 2): e(f"v_pk_add_f32 {vr(X+i, 2)}, {vr(X+i, 2)}, {vr(XN+i, 2)}")
        self.signal(6*L + 3)
        self.mark("w2 epi+signal")
    def h2_out(self, P, nst, vaddr, row_sgpr, L):
        k = self.k
        k.e(f"s_add_u32 {sT3}, {row_sgpr}, {H2S[0]}")
        for p in range(nst): k.e(f"v_add_u32 v{vDUM+p}, {sT3}, v{vaddr[p]}")
        for p in range(nst): k.ds(f"ds_write_b128 v{vDUM+p}, {vr(P+4*p, 4)}", "HW")
        self.bufsel(sT1, self.tbuf(L, "H2"))
        k.e(f"s_add_u32 {sT0}, {sT1}, {sH2R}"); k.e(f"s_add_u32 {sT0}, {sT0}, {row_sgpr}")
        self.xblock([f"buffer_store_dwordx4 {vr(P + 4*p, 4)}, v{vaddr[p]}, {S_WS}, {sT0} offen" for p in range(nst)], "XS")
    def phase_mlp(self, L):
        k = self.k; e = k.e; ev = self.ev; base = L * NPOS
        k.c("==== w3")
        self.recv(6*L + 3, self.tbuf(L, "X1"))
        B0, B1, B2, HX, H1, S1, G = ACC, ACC+16, ACC+32, ACC+48, ACC+52, ACC+56, ACC+60
        ones = vr(vONES, 4)
        ST = TMP + 24; P = TMP + 40
        def bodyA(s, T):
            w0 = ar(self.wslot(base + P_W3 + 2*s), 4); w1 = ar(self.wslot(base + P_W3 + 2*s + 1), 4)
            c = "0" if s == 0 else None
            for t in range(4): self.mfma(B0 + 4*t, w0, T[t], c)
            for t in range(4): self.mfma(B1 + 4*t, w1, T[t], c)
            self.mfma(S1, ones, T[0], c); self.mfma(G, T[0], T[0], c)
            if L == 0: self.mfma(C3, w0, ones, c); self.mfma(C3 + 4, w1, ones, c)
            self.wdone(base + P_W3 + 2*s + 1)
            if s in (3, 6, 9, 12): self.touch_h2(L, 4*((s//3 - 1) >> 1), (s//3 - 1) & 1)
        self.kloop(16, self.offA, bodyA, chunk=self.at_chunk, min_step=172, wmax=lambda s: base + P_W3 + 2*s + 1)
        self.mark("w3 passA")
        self.stats_items(S1, G, False, e); self.stats_write(False)
        self.read_stats_T(ST); k.wait(lg="SR")
        for (Bk, i) in ((B0, 0), (B1, 1)):
            self.ln_pk(Bk, C3 + 4*i, ST, ev); self.gelu_pk(Bk, 16, ev); self.pack(Bk, P, e)
            e(f"s_lshl_b32 {sT2}, {sW}, 11"); e(f"s_add_u32 {sT2}, {sT2}, {8*i*1024}")
            self.h2_out(P, 2, vST, sT2, L)
        self.mark("w3 epiA")
        TXB = TMP
        def bodyB(s, T):
            w0 = ar(self.wslot(base + P_W3 + 32 + 2*s), 4); w1 = ar(self.wslot(base + P_W3 + 33 + 2*s), 4)
            c = "0" if s == 0 else None
            for t in range(4): self.mfma(B2 + 4*t, w0, T[t], c)
            self.mfma(HX, w1, T[4], c); self.mfma(H1, w1, T[1], c)
            if L == 0: self.mfma(C3 + 8, w0, ones, c); self.mfma(C3 + 12, w1, ones, c)
            self.wdone(base + P_W3 + 33 + 2*s)
            if s in (2, 6): self.touch_h2(L, 8, 0 if s == 2 else 1)
            if s == 10: self.touch_h2(L, 12, 0, half=True)
        self.kloop(16, self.offA, bodyB, min_step=104, wmax=lambda s: base + P_W3 + 33 + 2*s, extra=(vTX, TXB))
        self.mark("w3 passB")
        STX = TMP + 12
        self.read_stats_T(ST)
        k.ds(f"ds_read_b128 {vr(STX, 4)}, v{vSAX}", "SR")
        k.wait(lg="SR")
        self.ln_pk(B2, C3 + 8, ST, ev)
        self.allow_w = False
        self.gelu_pk(B2, 16, e); self.pack(B2, P, e)
        e(f"s_lshl_b32 {sT2}, {sW}, 11"); e(f"s_add_u32 {sT2}, {sT2}, {16*1024}")
        self.h2_out(P, 2, vST, sT2, L)
        u = TMP + 48
        for (A_, st) in ((HX, STX), (H1, ST + 4)):
            for h in range(2): e(f"v_pk_mul_f32 {vr(u+2*h, 2)}, {vr(C3+12+2*h, 2)}, {vr(st, 2)} op_sel:[0,1] op_sel_hi:[1,1]")
            for h in range(2): e(f"v_pk_fma_f32 {vr(A_+2*h, 2)}, {vr(A_+2*h, 2)}, {vr(st, 2)}, {vr(u+2*h, 2)} op_sel_hi:[1,0,1] neg_lo:[0,0,1] neg_hi:[0,0,1]")
        self.gelu_pk(HX, 8, e)
        P2 = TMP + 16
        e(f"v_cvt_pk_bf16_f32 v{P2}, v{HX}, v{HX+1}"); e(f"v_cvt_pk_bf16_f32 v{P2+1}, v{HX+2}, v{HX+3}")
        e(f"v_cvt_pk_bf16_f32 v{P2+2}, v{H1}, v{H1+1}"); e(f"v_cvt_pk_bf16_f32 v{P2+3}, v{H1+2}, v{H1+3}")
        e(f"v_permlane16_swap_b32 v{P2}, v{P2+2}"); e(f"v_permlane16_swap_b32 v{P2+1}, v{P2+3}")
        e(f"s_lshr_b32 {sT2}, {sW}, 1"); e(f"s_lshl_b32 {sT2}, {sT2}, 11"); e(f"s_add_u32 {sT2}, {sT2}, {24*1024}")
        self.h2_out(P2, 1, [vSTH], sT2, L)
        self.bufsel(sSB, self.tbuf(L, "H2"))
        e(f"s_add_u32 {sLIM}, {sSB}, {224*1024}")
        e(f"s_add_u32 {sSB}, {sSB}, {sH2R}"); e(f"s_lshl_b32 {sT0}, {sW}, 13"); e(f"s_add_u32 {sSB}, {sSB}, {sT0}")
        e(f"s_lshr_b32 {sKH}, {sW}, 1"); e(f"s_lshl_b32 {sKH}, {sKH}, 12")
        k.wait(lg="HW")
        self.signal(6*L + 4)
        k.barrier()
        self.mark("w3 epiB+signal")
        k.c("==== w4")
        Y = ACC
        vTBs = [vTB, [248, 249, vXA, vXC]]
        h2_issued = {}
        def queue_chunk(c):
            h2_issued[c] = 0
            if c == 0:
                def f():
                    e(f"s_lshl_b32 {sT0}, {sW}, 13"); e(f"s_sub_u32 {sAT}, {sSB}, {sT0}"); e(f"s_lshl_b32 {sT0}, {sW}, 10"); e(f"s_add_u32 {sAT}, {sAT}, {sT0}")
                    e(f"s_add_u32 {sAT}, {sAT}, {28*1024}"); e(f"s_cmp_ge_u32 {sAT}, {sLIM}"); e(f"s_cselect_b32 {sT1}, {224*1024}, 0"); e(f"s_sub_u32 {sAT}, {sAT}, {sT1}")
                    e(f"s_add_u32 m0, {sT0}, {H2S[0] + 28*1024}")
                    k.vmem(f"buffer_load_dwordx4 v{vL16}, {S_WS}, {sAT} offen sc1 lds", ("H2", 0)); h2_issued[0] = 8
                self.vq.append(f); return
            for i in range(8):
                def f(i=i):
                    if i % 4 == 0:
                        e(f"s_add_u32 {sAT}, {sSB}, {(32*c + i)*1024}"); e(f"s_cmp_ge_u32 {sAT}, {sLIM}"); e(f"s_cselect_b32 {sT1}, {224*1024}, 0"); e(f"s_sub_u32 {sAT}, {sAT}, {sT1}")
                        e(f"s_lshl_b32 {sT0}, {sW}, 13"); e(f"s_add_u32 m0, {sT0}, {H2S[c % 4] + i*1024}")
                    k.vmem(f"buffer_load_dwordx4 v{vL16}, {S_WS}, {sAT} offen offset:{(i%4)*1024} sc1 lds", ("H2", c))
                    h2_issued[c] += 1
                self.vq.append(f)
        def set_addr(c):
            e(f"s_add_u32 {sT0}, {sKH}, {H2S[c % 4]}")
            for t in range(4): e(f"v_add_u32 v{vTBs[c % 2][t]}, {sT0}, v{vTA[t]}")
        set_addr(0)
        self.poll(sPM_ALL, 6*L + 4)
        self.mark("poll")
        for c in (0, 1, 2, 3): queue_chunk(c)
        self.start_atile(9)
        def chunk4(m):
            if m == 3:
                k.wait(vm=("H2", 0)); k.barrier(); return
            if m % 4 or m == 0: return
            c = m // 4
            while h2_issued[c] < 8: self.vq.popleft()()
            k.wait(vm=("H2", c)); k.barrier()
            if 2 <= c <= 4: queue_chunk(c + 2)
            set_addr(c)
        def offB(t, m): return vTBs[(m // 4) % 2][t], (m % 4) * 8192
        def body4(m, T):
            Pw = base + P_W4 + 2*m
            w0 = ar(self.wslot(Pw), 4); w1 = ar(self.wslot(Pw + 1), 4)
            for t in range(4): self.mfma(X + 4*t, w0, T[t])
            for t in range(4): self.mfma(Y + 4*t, w1, T[t], "0" if m == 0 else None)
            self.wdone(Pw + 1)
            if m == 24: self.allow_w = False
        self.kloop(28, offB, body4, chunk=chunk4, min_step=140, wmax=lambda m: base + P_W4 + 2*m + 1)
        e(f"s_lshl_b32 {sT0}, {sW}, 12"); e(f"s_add_u32 {sT1}, {sT0}, {L_YX}"); e(f"v_add_u32 v{vDUM}, {sT1}, v{vL16}")
        e(f"s_xor_b32 {sT0}, {sT0}, {2 << 12}"); e(f"s_add_u32 {sT1}, {sT0}, {L_YX}"); e(f"v_add_u32 v{vDUM+1}, {sT1}, v{vL16}")
        for t in range(4): k.ds(f"ds_write_b128 v{vDUM}, {vr(Y+4*t, 4)} offset:{t*1024}", "YW")
        k.wait(lg="YW"); k.barrier()
        for t in range(4): k.ds(f"ds_read_b128 {vr(Y+16+4*t, 4)}, v{vDUM+1} offset:{((t+2)&3)*1024}", ("YR", t))
        for t in range(4):
            k.wait(lg=("YR", t))
            for h in range(2): e(f"v_pk_add_f32 {vr(X+4*t+2*h, 2)}, {vr(X+4*t+2*h, 2)}, {vr(Y+16+4*t+2*h, 2)}")
        self.mark("w4 loop")
        if L + 1 < self.nlayers or self.stop < 99:
            self.pack(X, TMP, e); self.store_T(TMP, self.tbuf(L, "X2"))
            self.signal(6*L + 5)
            self.mark("x2 signal")
        if L + 1 == self.nlayers:
            self.pack(X, TMP, e)
            e(f"s_lshl_b32 {sT0}, {sC}, 16"); e(f"s_lshl_b32 {sT1}, {sJ}, 7"); e(f"s_add_u32 {sT0}, {sT0}, {sT1}")
            e(f"s_lshl_b32 {sT1}, {sW}, 5"); e(f"s_add_u32 {sT0}, {sT0}, {sT1}")
            for p in range(2):
                e(f"v_and_b32 v{TMP+8}, 1023, v{vST[p]}"); e(f"v_lshlrev_b32 v{TMP+8}, 6, v{TMP+8}")
                e(f"v_lshrrev_b32 v{TMP+9}, 10, v{vST[p]}"); e(f"v_lshlrev_b32 v{TMP+9}, 4, v{TMP+9}")
                e(f"v_add_u32 v{TMP+10+p}, v{TMP+8}, v{TMP+9}")
                k.vmem(f"buffer_store_dwordx4 {vr(TMP+4*p, 4)}, v{TMP+10+p}, {S_OUT}, {sT0} offen", "OUT")
    def gen(self):
        k = self.k
        self.prologue()
        for L in range(self.nlayers):
            if L > 0: self.recv(6*(L-1) + 5, self.tbuf(L-1, "X2"))
            for i, ph in enumerate([self.phase_qkv, self.phase_wo, self.phase_w1, self.phase_w2, self.phase_mlp]):
                ph(L)
        k.wait_all()
        if self.prof:
            self.mark("end")
            k.e(f"s_lshl_b32 {sT0}, s2, 2"); k.e(f"s_add_u32 {sT0}, {sT0}, {sW}"); k.e(f"s_lshl_b32 {sT0}, {sT0}, 10"); k.e(f"s_add_u32 {sT0}, {sT0}, {PROF_OFF}")
            k.e(f"buffer_store_dword v{vPROF}, v{vL4}, {S_WS}, {sT0} offen")
            k.e(f"buffer_store_dword v{vPROF+1}, v{vL4}, {S_WS}, {sT0} offen offset:256")
            k.e(f"buffer_store_dword v{vPROF+2}, v{vL4}, {S_WS}, {sT0} offen offset:512")
            k.e(f"buffer_store_dword v{vPROF+3}, v{vL4}, {S_WS}, {sT0} offen offset:768")
            k.e("s_waitcnt vmcnt(0)")
            json.dump(self.marks, open("marks.json", "w"))
        k.lab("M_done")
        k.e("s_endpgm")
        k.lab("M_end")
        return k.L

def gen_main(stop=99, nlayers=2, slow=0, prof=0, uniq=0, fine=0, verbose=0):
    m = Main(stop, nlayers)
    m.verbose = bool(int(verbose))
    m.fine = bool(int(fine))
    m.uniq = bool(int(uniq)); m.prof = bool(int(prof)); m.force_slow = bool(int(slow))
    return m.gen()
```

```python
from asmlib import *
from layout import *

PREP_WGS = 512
WARM = True

def gen_prep():
    k = K(); e = k.e
    e(f"s_cmp_ge_u32 s2, {PREP_WGS}")
    e("s_cbranch_scc1 P_done")
    e("s_load_dwordx2 s[4:5], s[0:1], 0")
    e("s_load_dwordx4 s[8:11], s[0:1], 8")
    e("s_load_dwordx4 s[12:15], s[0:1], 32")
    e("s_load_dwordx4 s[16:19], s[0:1], 48")
    e("s_load_dwordx2 s[20:21], s[0:1], 80")
    e("v_and_b32 v1, 63, v0")
    e("v_lshrrev_b32 v2, 6, v0")
    e("s_nop 0")
    e("v_readfirstlane_b32 s22, v2")
    e("s_lshl_b32 s23, s2, 2")
    e("s_add_u32 s23, s23, s22")
    e("v_lshlrev_b32 v3, 4, v1")
    e("s_waitcnt lgkmcnt(0)")
    e("s_mov_b32 s24, s20"); e("s_mov_b32 s25, s21"); e(f"s_mov_b32 s26, {WS_BYTES}"); e("s_mov_b32 s27, 0x00020000")
    e("s_mov_b32 s28, s4"); e("s_mov_b32 s29, s5"); e(f"s_mov_b32 s30, {2048*1024}"); e("s_mov_b32 s31, 0x00020000")
    e("s_lshr_b32 s40, s23, 6")
    e("s_and_b32 s41, s23, 63")
    e("s_and_b32 s42, s41, 7")
    e("s_lshr_b32 s43, s41, 3")
    e("v_lshrrev_b32 v4, 3, v1")
    e("v_and_b32 v5, 7, v1")
    e("v_lshlrev_b32 v6, 10, v4"); e("v_lshlrev_b32 v7, 4, v5"); e("v_add_u32 v6, v6, v7")
    e("s_lshl_b32 s44, s40, 16"); e("s_lshl_b32 s45, s42, 13"); e("s_add_u32 s44, s44, s45")
    e("s_lshl_b32 s45, s43, 7"); e("s_add_u32 s44, s44, s45")
    e("buffer_load_dwordx4 v[8:11], v6, s[28:31], s44 offen")
    e("v_lshlrev_b32 v12, 10, v5"); e("v_lshlrev_b32 v13, 4, v4"); e("v_add_u32 v12, v12, v13")
    e("s_lshl_b32 s46, s40, 21"); e(f"s_add_u32 s46, s46, {CLB + X0_OFF}")
    e("s_lshl_b32 s45, s43, 13"); e("s_add_u32 s46, s46, s45")
    e("s_lshl_b32 s45, s42, 7"); e("s_add_u32 s46, s46, s45")
    e("s_cmp_ge_u32 s23, 1664"); e("s_cbranch_scc1 P_now")
    def kk(r):
        e(f"s_and_b32 s52, {r}, 15"); e(f"s_lshr_b32 s53, {r}, 4")
    def dest_simple(pbase):
        e("s_lshl_b32 s54, s53, 2")
        e(f"s_add_u32 s55, s52, {pbase}")
        for b in range(4):
            e(f"s_add_u32 s60, s54, {b}"); e(f"s_mul_i32 s60, s60, {NPOS}"); e("s_add_u32 s60, s60, s55"); e(f"s_lshl_b32 s{56+b}, s60, 10")
    e("s_cmp_lt_u32 s23, 384"); e("s_cbranch_scc0 P_s1")
    e("s_mov_b32 s48, s8"); e("s_mov_b32 s49, s9"); e("s_mov_b32 s50, 3072"); e(f"s_mov_b32 s51, {512*3072}")
    kk("s23")
    e("s_lshr_b32 s61, s53, 3")
    e("s_and_b32 s62, s53, 7")
    e("s_lshl_b32 s55, s52, 1"); e("s_add_u32 s55, s55, s61"); e("s_sub_u32 s55, s55, 1")
    e(f"s_add_u32 s63, s52, {P_Q}")
    e("s_cmp_eq_u32 s61, 0"); e("s_cselect_b32 s55, s63, s55")
    e("s_lshl_b32 s54, s62, 2")
    for b in range(4):
        e(f"s_add_u32 s60, s54, {b}"); e(f"s_mul_i32 s60, s60, {NPOS}"); e("s_add_u32 s60, s60, s55"); e(f"s_lshl_b32 s{56+b}, s60, 10")
    for b in range(4): e(f"s_mov_b32 s{76+b}, s{56+b}")
    e("s_branch P_go")
    for (lab, nxt, lo, hi, p0, p1, pb) in [("P_s1", "P_s2", 384, 512, 10, 11, P_WO), ("P_s2", "P_s3", 512, 640, 12, 13, P_W1), ("P_s3", "P_s4", 640, 768, 14, 15, P_W2)]:
        k.lab(lab)
        e(f"s_cmp_lt_u32 s23, {hi}"); e(f"s_cbranch_scc0 {nxt}")
        e(f"s_mov_b32 s48, s{p0}"); e(f"s_mov_b32 s49, s{p1}"); e("s_mov_b32 s50, 1024"); e(f"s_mov_b32 s51, {512*1024}")
        e(f"s_sub_u32 s47, s23, {lo}")
        kk("s47")
        dest_simple(pb)
        for b in range(4): e(f"s_mov_b32 s{76+b}, s{56+b}")
        e("s_branch P_go")
    k.lab("P_s4")
    e("s_cmp_lt_u32 s23, 1216"); e("s_cbranch_scc0 P_s5")
    e("s_mov_b32 s48, s16"); e("s_mov_b32 s49, s17"); e("s_mov_b32 s50, 3584"); e(f"s_mov_b32 s51, {512*3584}")
    e("s_sub_u32 s47, s23, 768")
    kk("s47")
    for b in range(4):
        e("s_lshl_b32 s60, s53, 2"); e(f"s_add_u32 s60, s60, {b}")
        e("s_mul_i32 s61, s60, 4682"); e("s_lshr_b32 s61, s61, 16")
        e("s_mul_i32 s62, s61, 14"); e("s_sub_u32 s62, s60, s62")
        e("s_and_b32 s63, s62, 3")
        e("s_lshr_b32 s64, s62, 2")
        e("s_lshl_b32 s65, s52, 1")
        e("s_cmp_eq_u32 s64, 1"); e("s_cselect_b32 s71, 1, 0"); e("s_cmp_eq_u32 s64, 2"); e("s_cselect_b32 s71, 32, s71")
        e("s_cmp_eq_u32 s64, 3"); e("s_cselect_b32 s71, 33, s71")
        e("s_add_u32 s65, s65, s71"); e(f"s_add_u32 s65, s65, {P_W3}")
        e("s_sub_u32 s72, s62, 12"); e("s_lshl_b32 s72, s72, 1")
        e("s_cmp_ge_u32 s62, 12"); e("s_cselect_b32 s63, s72, s63")
        e("s_lshl_b32 s61, s61, 2"); e("s_add_u32 s61, s61, s63"); e(f"s_mul_i32 s61, s61, {NPOS}"); e("s_add_u32 s61, s61, s65")
        e(f"s_lshl_b32 s{56+b}, s61, 10")
        e(f"s_add_u32 s72, s{56+b}, {NPOS*1024}"); e("s_cmp_ge_u32 s62, 12"); e(f"s_cselect_b32 s{76+b}, s72, s{56+b}")
    e("s_branch P_go")
    k.lab("P_s5")
    e("s_mov_b32 s48, s18"); e("s_mov_b32 s49, s19"); e("s_mov_b32 s50, 1024"); e(f"s_mov_b32 s51, {1792*1024}")
    e("s_sub_u32 s47, s23, 1216")
    e("s_lshr_b32 s52, s47, 3"); e("s_and_b32 s53, s47, 7")
    e("s_mul_i32 s61, s52, 9363"); e("s_lshr_b32 s61, s61, 16")
    e("s_mul_i32 s62, s61, 7"); e("s_sub_u32 s62, s52, s62")
    e("s_sub_u32 s63, s61, s53"); e("s_and_b32 s63, s63, 7"); e("s_mul_i32 s63, s63, 7"); e("s_add_u32 s64, s63, s62")
    e("s_and_b32 s65, s64, 1"); e("s_lshr_b32 s64, s64, 1"); e("s_lshl_b32 s64, s64, 1"); e(f"s_add_u32 s64, s64, {P_W4}")
    e("s_lshl_b32 s61, s53, 2")
    for b in range(4):
        e(f"s_cmp_eq_u32 s65, {b >> 1}"); e(f"s_cselect_b32 s60, {b}, {b ^ 2}"); e("s_cselect_b32 s72, 0, 1")
        e("s_add_u32 s60, s60, s61"); e(f"s_mul_i32 s60, s60, {NPOS}"); e("s_add_u32 s60, s60, s64"); e("s_add_u32 s60, s60, s72"); e(f"s_lshl_b32 s{56+b}, s60, 10")
    for b in range(4): e(f"s_mov_b32 s{76+b}, s{56+b}")
    k.lab("P_go")
    e("s_mov_b32 s66, s50")
    e("s_mov_b32 s50, s51"); e("s_mov_b32 s51, 0x00020000")
    e("v_mul_lo_u32 v14, v4, s66"); e("v_add_u32 v14, v14, v7")
    e("s_mul_i32 s67, s52, s66"); e("s_lshl_b32 s67, s67, 5"); e("s_lshl_b32 s68, s53, 7"); e("s_add_u32 s67, s67, s68")
    e("s_lshl_b32 s68, s66, 3")
    e("s_lshl_b32 s69, s22, 12")
    e("s_mov_b32 m0, s69")
    for i in range(4):
        e(f"buffer_load_dwordx4 v14, s[48:51], s67 offen lds")
        if i < 3:
            e("s_add_u32 s67, s67, s68"); e("s_add_u32 m0, m0, 1024")
    e("v_lshrrev_b32 v15, 4, v1"); e("v_lshlrev_b32 v15, 3, v15")
    e("v_lshrrev_b32 v16, 2, v1"); e("v_and_b32 v16, 3, v16"); e("v_add_u32 v15, v15, v16"); e("v_lshlrev_b32 v15, 7, v15")
    e("v_and_b32 v16, 3, v1"); e("v_lshlrev_b32 v16, 3, v16"); e("v_add_u32 v15, v15, v16"); e("v_add_u32 v15, s69, v15")
    e("s_waitcnt vmcnt(0)")
    for b in range(4):
        e(f"ds_read_b64_tr_b16 v[{20+4*b}:{21+4*b}], v15 offset:{b*32}")
        e(f"ds_read_b64_tr_b16 v[{22+4*b}:{23+4*b}], v15 offset:{b*32+512}")
    e("s_waitcnt lgkmcnt(0)")
    for b in range(4):
        e(f"s_add_u32 s{56+b}, s{56+b}, {WSH}")
        e(f"buffer_store_dwordx4 v[{20+4*b}:{23+4*b}], v3, s[24:27], s{56+b} offen")
        lab2 = k.newlab("P_d2")
        e(f"s_add_u32 s{76+b}, s{76+b}, {WSH}"); e(f"s_cmp_eq_u32 s{76+b}, s{56+b}"); e(f"s_cbranch_scc1 {lab2}")
        e(f"buffer_store_dwordx4 v[{20+4*b}:{23+4*b}], v3, s[24:27], s{76+b} offen")
        k.lab(lab2)
    k.lab("P_now")
    e("s_waitcnt vmcnt(0)")
    e("buffer_store_dwordx4 v[8:11], v12, s[24:27], s46 offen")
    nfill = (SENT_END - KV1) // 1024
    for r in range(2):
        if r == 1:
            e(f"s_cmp_ge_u32 s23, {nfill - 2048}"); e("s_cbranch_scc1 P_nof")
        e(f"s_add_u32 s70, s23, {2048*r}"); e("s_lshl_b32 s70, s70, 10"); e(f"s_add_u32 s70, s70, {KV1}")
        e("v_mov_b32 v40, -1")
        for layer in range(2):
            for half in range(2):
                a1 = HALO + (layer*34 + 1)*2048 + half*1024
                a2 = HALO + (layer*34 + 32)*2048 + half*1024
                l1 = k.newlab("P_h"); l2 = k.newlab("P_h")
                e(f"s_cmp_lg_u32 s70, {a1}"); e(f"s_cbranch_scc1 {l1}")
                e("v_cmp_gt_u32 vcc, 32, v1"); e("v_cndmask_b32 v40, v40, 0, vcc" if False else "v_cndmask_b32_e64 v40, v40, 0, vcc")
                k.lab(l1)
                e(f"s_cmp_lg_u32 s70, {a2}"); e(f"s_cbranch_scc1 {l2}")
                e("v_cmp_le_u32 vcc, 32, v1"); e("v_cndmask_b32_e64 v40, v40, 0, vcc")
                k.lab(l2)
        e("v_mov_b32 v41, v40"); e("v_mov_b32 v42, v40"); e("v_mov_b32 v43, v40")
        e("buffer_store_dwordx4 v[40:43], v3, s[24:27], s70 offen")
        e("s_nop 1")
    k.lab("P_nof")
    if WARM:
        e("s_and_b32 s70, s2, 7"); e("s_lshr_b32 s71, s2, 3"); e("s_lshl_b32 s71, s71, 2"); e("s_add_u32 s71, s71, s22")
        e("v_mov_b32 v44, 0"); e("v_mov_b32 v45, 0"); e("v_mov_b32 v46, 0"); e("v_mov_b32 v47, 0")
        for r in range(5):
            lab = k.newlab("P_w")
            e(f"s_add_u32 s72, s71, {256*r}")
            if r == 4:
                e("s_cmp_ge_u32 s72, 1152"); e(f"s_cbranch_scc1 {lab}")
            e("s_mul_i32 s73, s72, 58255"); e("s_lshr_b32 s73, s73, 24")
            e("s_mul_i32 s74, s73, 288"); e("s_sub_u32 s74, s72, s74")
            e("s_lshl_b32 s75, s70, 2"); e("s_add_u32 s75, s75, s73"); e("s_lshl_b32 s75, s75, 21"); e(f"s_add_u32 s75, s75, {CLB}")
            e("s_lshl_b32 s76, s74, 10")
            e(f"s_add_u32 s77, s76, {H2F_OFF}"); e(f"s_add_u32 s78, s76, {TB1_OFF - 224*1024}")
            e("s_cmp_lt_u32 s74, 224"); e("s_cselect_b32 s77, s77, s78"); e("s_add_u32 s75, s75, s77")
            e("buffer_store_dwordx4 v[44:47], v3, s[24:27], s75 offen")
            k.lab(lab)
    e(f"s_cmp_ge_u32 s23, {ZERO_END//1024}"); e("s_cbranch_scc1 P_done")
    e("s_lshl_b32 s70, s23, 10")
    e("v_mov_b32 v44, 0"); e("v_mov_b32 v45, 0"); e("v_mov_b32 v46, 0"); e("v_mov_b32 v47, 0")
    e("buffer_store_dwordx4 v[44:47], v3, s[24:27], s70 offen")
    k.lab("P_done")
    e("s_endpgm")
    return k.L
```

```python
from asmlib import *
from layout import *

PREP_WGS = 512
WARM = True
CODE_KB = 0

def gen_prep():
    k = K(); e = k.e
    e(f"s_cmp_ge_u32 s2, {PREP_WGS}")
    e("s_cbranch_scc1 P_done")
    e("s_load_dwordx2 s[4:5], s[0:1], 0")
    e("s_load_dwordx4 s[8:11], s[0:1], 8")
    e("s_load_dwordx4 s[12:15], s[0:1], 32")
    e("s_load_dwordx4 s[16:19], s[0:1], 48")
    e("s_load_dwordx2 s[20:21], s[0:1], 80")
    e("v_and_b32 v1, 63, v0")
    e("v_lshrrev_b32 v2, 6, v0")
    e("s_nop 0")
    e("v_readfirstlane_b32 s22, v2")
    e("s_lshl_b32 s23, s2, 2")
    e("s_add_u32 s23, s23, s22")
    e("v_lshlrev_b32 v3, 4, v1")
    e("s_waitcnt lgkmcnt(0)")
    e("s_mov_b32 s24, s20"); e("s_mov_b32 s25, s21"); e(f"s_mov_b32 s26, {WS_BYTES}"); e("s_mov_b32 s27, 0x00020000")
    e("s_mov_b32 s28, s4"); e("s_mov_b32 s29, s5"); e(f"s_mov_b32 s30, {2048*1024}"); e("s_mov_b32 s31, 0x00020000")
    if CODE_KB:
        lab = k.newlab("P_c")
        e("s_lshr_b32 s70, s2, 3"); e("s_lshl_b32 s70, s70, 2"); e("s_add_u32 s70, s70, s22")
        e("s_cmp_ge_u32 s70, (M_end-main_kernel)/1024"); e(f"s_cbranch_scc1 {lab}")
        e("s_getpc_b64 s[72:73]")
        k.lab("P_pc")
        e("s_add_u32 s72, s72, main_kernel-P_pc"); e("s_addc_u32 s73, s73, 0")
        e("s_lshl_b32 s70, s70, 10"); e("s_add_u32 s72, s72, s70"); e("s_addc_u32 s73, s73, 0")
        e("global_load_dwordx4 v[48:51], v3, s[72:73]")
        k.lab(lab)
    e("s_lshr_b32 s40, s23, 6")
    e("s_and_b32 s41, s23, 63")
    e("s_and_b32 s42, s41, 7")
    e("s_lshr_b32 s43, s41, 3")
    e("v_lshrrev_b32 v4, 3, v1")
    e("v_and_b32 v5, 7, v1")
    e("v_lshlrev_b32 v6, 10, v4"); e("v_lshlrev_b32 v7, 4, v5"); e("v_add_u32 v6, v6, v7")
    e("s_lshl_b32 s44, s40, 16"); e("s_lshl_b32 s45, s42, 13"); e("s_add_u32 s44, s44, s45")
    e("s_lshl_b32 s45, s43, 7"); e("s_add_u32 s44, s44, s45")
    e("buffer_load_dwordx4 v[8:11], v6, s[28:31], s44 offen")
    e("v_lshlrev_b32 v12, 10, v5"); e("v_lshlrev_b32 v13, 4, v4"); e("v_add_u32 v12, v12, v13")
    e("s_lshl_b32 s46, s40, 21"); e(f"s_add_u32 s46, s46, {CLB + X0_OFF}")
    e("s_lshl_b32 s45, s43, 13"); e("s_add_u32 s46, s46, s45")
    e("s_lshl_b32 s45, s42, 7"); e("s_add_u32 s46, s46, s45")
    e("s_cmp_ge_u32 s23, 1664"); e("s_cbranch_scc1 P_now")
    def kk(r):
        e(f"s_and_b32 s52, {r}, 15"); e(f"s_lshr_b32 s53, {r}, 4")
    def dest_simple(pbase):
        e("s_lshl_b32 s54, s53, 2")
        e(f"s_add_u32 s55, s52, {pbase}")
        for b in range(4):
            e(f"s_add_u32 s60, s54, {b}"); e(f"s_mul_i32 s60, s60, {NPOS}"); e("s_add_u32 s60, s60, s55"); e(f"s_lshl_b32 s{56+b}, s60, 10")
    e("s_cmp_lt_u32 s23, 384"); e("s_cbranch_scc0 P_s1")
    e("s_mov_b32 s48, s8"); e("s_mov_b32 s49, s9"); e("s_mov_b32 s50, 3072"); e(f"s_mov_b32 s51, {512*3072}")
    kk("s23")
    e("s_lshr_b32 s61, s53, 3")
    e("s_and_b32 s62, s53, 7")
    e("s_lshl_b32 s55, s52, 1"); e("s_add_u32 s55, s55, s61"); e("s_sub_u32 s55, s55, 1")
    e(f"s_add_u32 s63, s52, {P_Q}")
    e("s_cmp_eq_u32 s61, 0"); e("s_cselect_b32 s55, s63, s55")
    e("s_lshl_b32 s54, s62, 2")
    for b in range(4):
        e(f"s_add_u32 s60, s54, {b}"); e(f"s_mul_i32 s60, s60, {NPOS}"); e("s_add_u32 s60, s60, s55"); e(f"s_lshl_b32 s{56+b}, s60, 10")
    for b in range(4): e(f"s_mov_b32 s{76+b}, s{56+b}")
    e("s_branch P_go")
    for (lab, nxt, lo, hi, p0, p1, pb) in [("P_s1", "P_s2", 384, 512, 10, 11, P_WO), ("P_s2", "P_s3", 512, 640, 12, 13, P_W1), ("P_s3", "P_s4", 640, 768, 14, 15, P_W2)]:
        k.lab(lab)
        e(f"s_cmp_lt_u32 s23, {hi}"); e(f"s_cbranch_scc0 {nxt}")
        e(f"s_mov_b32 s48, s{p0}"); e(f"s_mov_b32 s49, s{p1}"); e("s_mov_b32 s50, 1024"); e(f"s_mov_b32 s51, {512*1024}")
        e(f"s_sub_u32 s47, s23, {lo}")
        kk("s47")
        dest_simple(pb)
        for b in range(4): e(f"s_mov_b32 s{76+b}, s{56+b}")
        e("s_branch P_go")
    k.lab("P_s4")
    e("s_cmp_lt_u32 s23, 1216"); e("s_cbranch_scc0 P_s5")
    e("s_mov_b32 s48, s16"); e("s_mov_b32 s49, s17"); e("s_mov_b32 s50, 3584"); e(f"s_mov_b32 s51, {512*3584}")
    e("s_sub_u32 s47, s23, 768")
    kk("s47")
    for b in range(4):
        e("s_lshl_b32 s60, s53, 2"); e(f"s_add_u32 s60, s60, {b}")
        e("s_mul_i32 s61, s60, 4682"); e("s_lshr_b32 s61, s61, 16")
        e("s_mul_i32 s62, s61, 14"); e("s_sub_u32 s62, s60, s62")
        e("s_and_b32 s63, s62, 3")
        e("s_lshr_b32 s64, s62, 2")
        e("s_lshl_b32 s65, s52, 1")
        e("s_cmp_eq_u32 s64, 1"); e("s_cselect_b32 s71, 1, 0"); e("s_cmp_eq_u32 s64, 2"); e("s_cselect_b32 s71, 32, s71")
        e("s_cmp_eq_u32 s64, 3"); e("s_cselect_b32 s71, 33, s71")
        e("s_add_u32 s65, s65, s71"); e(f"s_add_u32 s65, s65, {P_W3}")
        e("s_sub_u32 s72, s62, 12"); e("s_lshl_b32 s72, s72, 1")
        e("s_cmp_ge_u32 s62, 12"); e("s_cselect_b32 s63, s72, s63")
        e("s_lshl_b32 s61, s61, 2"); e("s_add_u32 s61, s61, s63"); e(f"s_mul_i32 s61, s61, {NPOS}"); e("s_add_u32 s61, s61, s65")
        e(f"s_lshl_b32 s{56+b}, s61, 10")
        e(f"s_add_u32 s72, s{56+b}, {NPOS*1024}"); e("s_cmp_ge_u32 s62, 12"); e(f"s_cselect_b32 s{76+b}, s72, s{56+b}")
    e("s_branch P_go")
    k.lab("P_s5")
    e("s_mov_b32 s48, s18"); e("s_mov_b32 s49, s19"); e("s_mov_b32 s50, 1024"); e(f"s_mov_b32 s51, {1792*1024}")
    e("s_sub_u32 s47, s23, 1216")
    e("s_lshr_b32 s52, s47, 3"); e("s_and_b32 s53, s47, 7")
    e("s_mul_i32 s61, s52, 9363"); e("s_lshr_b32 s61, s61, 16")
    e("s_mul_i32 s62, s61, 7"); e("s_sub_u32 s62, s52, s62")
    e("s_sub_u32 s63, s61, s53"); e("s_and_b32 s63, s63, 7"); e("s_mul_i32 s63, s63, 7"); e("s_add_u32 s64, s63, s62")
    e("s_and_b32 s65, s64, 1"); e("s_lshr_b32 s64, s64, 1"); e("s_lshl_b32 s64, s64, 1"); e(f"s_add_u32 s64, s64, {P_W4}")
    e("s_lshl_b32 s61, s53, 2")
    for b in range(4):
        e(f"s_cmp_eq_u32 s65, {b >> 1}"); e(f"s_cselect_b32 s60, {b}, {b ^ 2}"); e("s_cselect_b32 s72, 0, 1")
        e("s_add_u32 s60, s60, s61"); e(f"s_mul_i32 s60, s60, {NPOS}"); e("s_add_u32 s60, s60, s64"); e("s_add_u32 s60, s60, s72"); e(f"s_lshl_b32 s{56+b}, s60, 10")
    for b in range(4): e(f"s_mov_b32 s{76+b}, s{56+b}")
    k.lab("P_go")
    e("s_mov_b32 s66, s50")
    e("s_mov_b32 s50, s51"); e("s_mov_b32 s51, 0x00020000")
    e("v_mul_lo_u32 v14, v4, s66"); e("v_add_u32 v14, v14, v7")
    e("s_mul_i32 s67, s52, s66"); e("s_lshl_b32 s67, s67, 5"); e("s_lshl_b32 s68, s53, 7"); e("s_add_u32 s67, s67, s68")
    e("s_lshl_b32 s68, s66, 3")
    e("s_lshl_b32 s69, s22, 12")
    e("s_mov_b32 m0, s69")
    for i in range(4):
        e(f"buffer_load_dwordx4 v14, s[48:51], s67 offen lds")
        if i < 3:
            e("s_add_u32 s67, s67, s68"); e("s_add_u32 m0, m0, 1024")
    e("v_lshrrev_b32 v15, 4, v1"); e("v_lshlrev_b32 v15, 3, v15")
    e("v_lshrrev_b32 v16, 2, v1"); e("v_and_b32 v16, 3, v16"); e("v_add_u32 v15, v15, v16"); e("v_lshlrev_b32 v15, 7, v15")
    e("v_and_b32 v16, 3, v1"); e("v_lshlrev_b32 v16, 3, v16"); e("v_add_u32 v15, v15, v16"); e("v_add_u32 v15, s69, v15")
    e("s_waitcnt vmcnt(0)")
    for b in range(4):
        e(f"ds_read_b64_tr_b16 v[{20+4*b}:{21+4*b}], v15 offset:{b*32}")
        e(f"ds_read_b64_tr_b16 v[{22+4*b}:{23+4*b}], v15 offset:{b*32+512}")
    e("s_waitcnt lgkmcnt(0)")
    for b in range(4):
        e(f"s_add_u32 s{56+b}, s{56+b}, {WSH}")
        e(f"buffer_store_dwordx4 v[{20+4*b}:{23+4*b}], v3, s[24:27], s{56+b} offen")
        lab2 = k.newlab("P_d2")
        e(f"s_add_u32 s{76+b}, s{76+b}, {WSH}"); e(f"s_cmp_eq_u32 s{76+b}, s{56+b}"); e(f"s_cbranch_scc1 {lab2}")
        e(f"buffer_store_dwordx4 v[{20+4*b}:{23+4*b}], v3, s[24:27], s{76+b} offen")
        k.lab(lab2)
    k.lab("P_now")
    e("s_waitcnt vmcnt(0)")
    e("buffer_store_dwordx4 v[8:11], v12, s[24:27], s46 offen")
    nfill = (SENT_END - KV1) // 1024
    for r in range(2):
        if r == 1:
            e(f"s_cmp_ge_u32 s23, {nfill - 2048}"); e("s_cbranch_scc1 P_nof")
        e(f"s_add_u32 s70, s23, {2048*r}"); e("s_lshl_b32 s70, s70, 10"); e(f"s_add_u32 s70, s70, {KV1}")
        e("v_mov_b32 v40, -1")
        for layer in range(2):
            for half in range(2):
                a1 = HALO + (layer*34 + 1)*2048 + half*1024
                a2 = HALO + (layer*34 + 32)*2048 + half*1024
                l1 = k.newlab("P_h"); l2 = k.newlab("P_h")
                e(f"s_cmp_lg_u32 s70, {a1}"); e(f"s_cbranch_scc1 {l1}")
                e("v_cmp_gt_u32 vcc, 32, v1"); e("v_cndmask_b32 v40, v40, 0, vcc" if False else "v_cndmask_b32_e64 v40, v40, 0, vcc")
                k.lab(l1)
                e(f"s_cmp_lg_u32 s70, {a2}"); e(f"s_cbranch_scc1 {l2}")
                e("v_cmp_le_u32 vcc, 32, v1"); e("v_cndmask_b32_e64 v40, v40, 0, vcc")
                k.lab(l2)
        e("v_mov_b32 v41, v40"); e("v_mov_b32 v42, v40"); e("v_mov_b32 v43, v40")
        e("buffer_store_dwordx4 v[40:43], v3, s[24:27], s70 offen")
        e("s_nop 1")
    k.lab("P_nof")
    if WARM:
        e("s_and_b32 s70, s2, 7"); e("s_lshr_b32 s71, s2, 3"); e("s_lshl_b32 s71, s71, 2"); e("s_add_u32 s71, s71, s22")
        e("v_mov_b32 v44, 0"); e("v_mov_b32 v45, 0"); e("v_mov_b32 v46, 0"); e("v_mov_b32 v47, 0")
        for r in range(5):
            lab = k.newlab("P_w")
            e(f"s_add_u32 s72, s71, {256*r}")
            if r == 4:
                e("s_cmp_ge_u32 s72, 1152"); e(f"s_cbranch_scc1 {lab}")
            e("s_mul_i32 s73, s72, 58255"); e("s_lshr_b32 s73, s73, 24")
            e("s_mul_i32 s74, s73, 288"); e("s_sub_u32 s74, s72, s74")
            e("s_lshl_b32 s75, s70, 2"); e("s_add_u32 s75, s75, s73"); e("s_lshl_b32 s75, s75, 21"); e(f"s_add_u32 s75, s75, {CLB}")
            e("s_lshl_b32 s76, s74, 10")
            e(f"s_add_u32 s77, s76, {H2F_OFF}"); e(f"s_add_u32 s78, s76, {TB1_OFF - 224*1024}")
            e("s_cmp_lt_u32 s74, 224"); e("s_cselect_b32 s77, s77, s78"); e("s_add_u32 s75, s75, s77")
            e("buffer_store_dwordx4 v[44:47], v3, s[24:27], s75 offen")
            k.lab(lab)
    e(f"s_cmp_ge_u32 s23, {ZERO_END//1024}"); e("s_cbranch_scc1 P_done")
    e("s_lshl_b32 s70, s23, 10")
    e("v_mov_b32 v44, 0"); e("v_mov_b32 v45, 0"); e("v_mov_b32 v46, 0"); e("v_mov_b32 v47, 0")
    e("buffer_store_dwordx4 v[44:47], v3, s[24:27], s70 offen")
    k.lab("P_done")
    e("s_endpgm")
    return k.L
```

```python
import sys, importlib
from asmlib import *
from layout import *
import prep

HEAD = """; Kernarg layout (88 bytes): A_x 0, A_wqkv 8, A_wo 16, B_x 24, B_w1 32, B_w2 40, B_w3 48, B_w4 56, out 64, debug 72, ws 80
"""

def kernel_text(name, lines, vgpr, accum, sgpr=102):
    body, nn = pad_hazards(lines)
    s = f".globl {name}\n.p2align 8\n.type {name},@function\n{name}:\n" + "\n".join(body) + "\n"
    d = f""".amdhsa_kernel {name}
  .amdhsa_next_free_vgpr {vgpr}
  .amdhsa_next_free_sgpr {sgpr}
  .amdhsa_accum_offset {accum}
  .amdhsa_group_segment_fixed_size 0
  .amdhsa_kernarg_size 88
  .amdhsa_user_sgpr_count 2
  .amdhsa_user_sgpr_kernarg_segment_ptr 1
  .amdhsa_system_sgpr_workgroup_id_x 1
  .amdhsa_float_denorm_mode_32 3
  .amdhsa_float_denorm_mode_16_64 3
.end_amdhsa_kernel
"""
    return s, d, nn, len(body)

def build(kernels):
    hdr = HEAD
    for (name, lines, vgpr, accum, grid, block, lds) in kernels:
        hdr += f"; @launch kernel={name} grid=({grid},1,1) block=({block},1,1) lds={lds}\n"
    txt = '.amdgcn_target "amdgcn-amd-amdhsa--gfx950"\n.text\n'
    desc = '.section .rodata,"a"\n'
    for (name, lines, vgpr, accum, grid, block, lds) in kernels:
        s, d, nn, n = kernel_text(name, lines, vgpr, accum)
        sys.stderr.write(f"{name}: {n} lines, {nn} hazard nops\n")
        txt += s
        desc += ".p2align 6\n" + d
    return hdr + txt + desc

if __name__ == "__main__":
    out = sys.argv[1] if len(sys.argv) > 1 else "k.s"
    what = sys.argv[2] if len(sys.argv) > 2 else "all"
    if what != "prep":
        import mainl2 as mainl
        opts = dict(a.split("=") for a in sys.argv[3:])
        codepf = int(opts.pop("codepf", 1))
        prep.WARM = bool(int(opts.pop("warm", 1)))
        ml = mainl.gen_main(**opts)
        nins = sum(1 for l in ml if l.startswith("  ") and not l.strip().startswith(";"))
        prep.CODE_KB = (nins * 8 // 1024) if codepf else 0
        ks = [("prep_kernel", prep.gen_prep(), 64, 64, prep.PREP_WGS, 256, 16384)]
        ks.append(("main_kernel", ml, 512, 256, 256, 256, mainl.LDS_BYTES))
    else:
        ks = [("prep_kernel", prep.gen_prep(), 64, 64, prep.PREP_WGS, 256, 16384)]
    open(out, "w").write(build(ks))
```

```python
import sys, importlib
from asmlib import *
from layout import *
import prep

HEAD = """; Kernarg layout (88 bytes): A_x 0, A_wqkv 8, A_wo 16, B_x 24, B_w1 32, B_w2 40, B_w3 48, B_w4 56, out 64, debug 72, ws 80
"""

def kernel_text(name, lines, vgpr, accum, sgpr=102):
    body, nn = pad_hazards(lines)
    s = f".globl {name}\n.p2align 8\n.type {name},@function\n{name}:\n" + "\n".join(body) + "\n"
    d = f""".amdhsa_kernel {name}
  .amdhsa_next_free_vgpr {vgpr}
  .amdhsa_next_free_sgpr {sgpr}
  .amdhsa_accum_offset {accum}
  .amdhsa_group_segment_fixed_size 0
  .amdhsa_kernarg_size 88
  .amdhsa_user_sgpr_count 2
  .amdhsa_user_sgpr_kernarg_segment_ptr 1
  .amdhsa_system_sgpr_workgroup_id_x 1
  .amdhsa_float_denorm_mode_32 3
  .amdhsa_float_denorm_mode_16_64 3
.end_amdhsa_kernel
"""
    return s, d, nn, len(body)

def build(kernels):
    hdr = HEAD
    for (name, lines, vgpr, accum, grid, block, lds) in kernels:
        hdr += f"; @launch kernel={name} grid=({grid},1,1) block=({block},1,1) lds={lds}\n"
    txt = '.amdgcn_target "amdgcn-amd-amdhsa--gfx950"\n.text\n'
    desc = '.section .rodata,"a"\n'
    for (name, lines, vgpr, accum, grid, block, lds) in kernels:
        s, d, nn, n = kernel_text(name, lines, vgpr, accum)
        sys.stderr.write(f"{name}: {n} lines, {nn} hazard nops\n")
        txt += s
        desc += ".p2align 6\n" + d
    return hdr + txt + desc

if __name__ == "__main__":
    out = sys.argv[1] if len(sys.argv) > 1 else "k.s"
    what = sys.argv[2] if len(sys.argv) > 2 else "all"
    if what != "prep":
        import mainl2 as mainl
        opts = dict(a.split("=") for a in sys.argv[3:])
        codepf = int(opts.pop("codepf", 1))
        nnop = int(opts.pop("nnop", 0))
        prep.WARM = bool(int(opts.pop("warm", 1)))
        ml = mainl.gen_main(**opts)
        nins = sum(1 for l in ml if l.startswith("  ") and not l.strip().startswith(";"))
        prep.CODE_KB = (nins * 8 // 1024) if codepf else 0
        ks = [("prep_kernel", prep.gen_prep(), 64, 64, prep.PREP_WGS, 256, 16384)]
        ks.append(("main_kernel", ml, 512, 256, 256, 256, mainl.LDS_BYTES))
    else:
        ks = [("prep_kernel", prep.gen_prep(), 64, 64, prep.PREP_WGS, 256, 16384)]
    if what != "prep" and nnop:
        for i in range(nnop): pass
        ks_launch = ks + [("nop_kernel", ["  s_endpgm"], 8, 8, 256, 64, 0)] * nnop
        txt = build(ks + [("nop_kernel", ["  s_endpgm"], 8, 8, 256, 64, 0)])
        line = "; @launch kernel=nop_kernel grid=(256,1,1) block=(64,1,1) lds=0\n"
        txt = txt.replace(line, line * nnop)
        open(out, "w").write(txt)
    else:
        open(out, "w").write(build(ks))
```

```python
FLG   = 0x000000
XCC   = 0x03A000
ZERO_END = 0x040000
KV1   = 0x040000
KV2   = 0x2C0000
KV2_ENT = 1024
HALO  = 0x360000
SENT_END = 0x382000
WSH   = 0x400000
NPOS  = 216
CLB   = 0x1000000
CL_STRIDE = 0x200000
X0_OFF = 0x00000
LAYER_OFF = 0x10000
LAYER_SZ  = 0x90000
O_OFF, XP_OFF, H_OFF, X1_OFF, X2_OFF, H2_OFF = 0x00000, 0x10000, 0x20000, 0x30000, 0x40000, 0x50000
WS_BYTES = 268435456
P_KV, P_Q, P_WO, P_W1, P_W2, P_W3, P_W4 = 0, 32, 48, 64, 80, 96, 160
SENT = 0xFFFFFFFF
KNAME = "interleave_layers__linear_attn_block__mixer_s_mlp__prompt_kernel"
TB0_OFF = X0_OFF
TB1_OFF = 0x1C0000
H2F_OFF = 0x180000
TBS = [0x00000, 0x1C0000, 0x1D0000]
NREP = 4
FLG_CL = 14 * NREP * 128
```

```python
from asmlib import *
from layout import *

PREP_WGS = 512
WARM = True
RT = False
SENT_TB = False
SC1 = False
EARLY = int(__import__("os").environ.get("EARLY", "1"))
CODE_KB = 0

def gen_prep():
    k = K(); e = k.e
    e(f"s_cmp_ge_u32 s2, {PREP_WGS}")
    e("s_cbranch_scc1 P_done")
    e("s_load_dwordx2 s[4:5], s[0:1], 0")
    e("s_load_dwordx4 s[8:11], s[0:1], 8")
    e("s_load_dwordx4 s[12:15], s[0:1], 32")
    e("s_load_dwordx4 s[16:19], s[0:1], 48")
    e("s_load_dwordx2 s[20:21], s[0:1], 80")
    if RT: e("s_memrealtime s[90:91]")
    e("v_and_b32 v1, 63, v0")
    e("v_lshrrev_b32 v2, 6, v0")
    e("s_nop 0")
    e("v_readfirstlane_b32 s22, v2")
    e("s_lshl_b32 s23, s2, 2")
    e("s_add_u32 s23, s23, s22")
    e("v_lshlrev_b32 v3, 4, v1")
    e("s_waitcnt lgkmcnt(0)")
    e("s_mov_b32 s24, s20"); e("s_mov_b32 s25, s21"); e(f"s_mov_b32 s26, {WS_BYTES}"); e("s_mov_b32 s27, 0x00020000")
    e("s_mov_b32 s28, s4"); e("s_mov_b32 s29, s5"); e(f"s_mov_b32 s30, {2048*1024}"); e("s_mov_b32 s31, 0x00020000")
    if CODE_KB:
        lab = k.newlab("P_c")
        e("s_lshr_b32 s70, s2, 3"); e("s_lshl_b32 s70, s70, 2"); e("s_add_u32 s70, s70, s22")
        e("s_cmp_ge_u32 s70, (M_end-main_kernel)/1024"); e(f"s_cbranch_scc1 {lab}")
        e("s_getpc_b64 s[72:73]")
        k.lab("P_pc")
        e("s_add_u32 s72, s72, main_kernel-P_pc"); e("s_addc_u32 s73, s73, 0")
        e("s_lshl_b32 s70, s70, 10"); e("s_add_u32 s72, s72, s70"); e("s_addc_u32 s73, s73, 0")
        e("global_load_dwordx4 v[48:51], v3, s[72:73]")
        k.lab(lab)
    e("s_lshr_b32 s40, s23, 6")
    e("s_and_b32 s41, s23, 63")
    e("s_and_b32 s42, s41, 7")
    e("s_lshr_b32 s43, s41, 3")
    e("v_lshrrev_b32 v4, 3, v1")
    e("v_and_b32 v5, 7, v1")
    e("v_lshlrev_b32 v6, 10, v4"); e("v_lshlrev_b32 v7, 4, v5"); e("v_add_u32 v6, v6, v7")
    e("s_lshl_b32 s44, s40, 16"); e("s_lshl_b32 s45, s42, 13"); e("s_add_u32 s44, s44, s45")
    e("s_lshl_b32 s45, s43, 7"); e("s_add_u32 s44, s44, s45")
    e("buffer_load_dwordx4 v[8:11], v6, s[28:31], s44 offen")
    e("v_lshlrev_b32 v12, 10, v5"); e("v_lshlrev_b32 v13, 4, v4"); e("v_add_u32 v12, v12, v13")
    e("s_lshl_b32 s46, s40, 21"); e(f"s_add_u32 s46, s46, {CLB + X0_OFF}")
    e("s_lshl_b32 s45, s43, 13"); e("s_add_u32 s46, s46, s45")
    e("s_lshl_b32 s45, s42, 7"); e("s_add_u32 s46, s46, s45")
    e("s_cmp_ge_u32 s23, 1664"); e("s_cbranch_scc1 P_now")
    def kk(r):
        e(f"s_and_b32 s52, {r}, 15"); e(f"s_lshr_b32 s53, {r}, 4")
    def dest_simple(pbase):
        e("s_lshl_b32 s54, s53, 2")
        e(f"s_add_u32 s55, s52, {pbase}")
        for b in range(4):
            e(f"s_add_u32 s60, s54, {b}"); e(f"s_mul_i32 s60, s60, {NPOS}"); e("s_add_u32 s60, s60, s55"); e(f"s_lshl_b32 s{56+b}, s60, 10")
    e("s_cmp_lt_u32 s23, 384"); e("s_cbranch_scc0 P_s1")
    e("s_mov_b32 s48, s8"); e("s_mov_b32 s49, s9"); e("s_mov_b32 s50, 3072"); e(f"s_mov_b32 s51, {512*3072}")
    kk("s23")
    e("s_lshr_b32 s61, s53, 3")
    e("s_and_b32 s62, s53, 7")
    e("s_lshl_b32 s55, s52, 1"); e("s_add_u32 s55, s55, s61"); e("s_sub_u32 s55, s55, 1")
    e(f"s_add_u32 s63, s52, {P_Q}")
    e("s_cmp_eq_u32 s61, 0"); e("s_cselect_b32 s55, s63, s55")
    e("s_lshl_b32 s54, s62, 2")
    for b in range(4):
        e(f"s_add_u32 s60, s54, {b}"); e(f"s_mul_i32 s60, s60, {NPOS}"); e("s_add_u32 s60, s60, s55"); e(f"s_lshl_b32 s{56+b}, s60, 10")
    for b in range(4): e(f"s_mov_b32 s{76+b}, s{56+b}")
    e("s_branch P_go")
    for (lab, nxt, lo, hi, p0, p1, pb) in [("P_s1", "P_s2", 384, 512, 10, 11, P_WO), ("P_s2", "P_s3", 512, 640, 12, 13, P_W1), ("P_s3", "P_s4", 640, 768, 14, 15, P_W2)]:
        k.lab(lab)
        e(f"s_cmp_lt_u32 s23, {hi}"); e(f"s_cbranch_scc0 {nxt}")
        e(f"s_mov_b32 s48, s{p0}"); e(f"s_mov_b32 s49, s{p1}"); e("s_mov_b32 s50, 1024"); e(f"s_mov_b32 s51, {512*1024}")
        e(f"s_sub_u32 s47, s23, {lo}")
        kk("s47")
        dest_simple(pb)
        for b in range(4): e(f"s_mov_b32 s{76+b}, s{56+b}")
        e("s_branch P_go")
    k.lab("P_s4")
    e("s_cmp_lt_u32 s23, 1216"); e("s_cbranch_scc0 P_s5")
    e("s_mov_b32 s48, s16"); e("s_mov_b32 s49, s17"); e("s_mov_b32 s50, 3584"); e(f"s_mov_b32 s51, {512*3584}")
    e("s_sub_u32 s47, s23, 768")
    kk("s47")
    for b in range(4):
        e("s_lshl_b32 s60, s53, 2"); e(f"s_add_u32 s60, s60, {b}")
        e("s_mul_i32 s61, s60, 4682"); e("s_lshr_b32 s61, s61, 16")
        e("s_mul_i32 s62, s61, 14"); e("s_sub_u32 s62, s60, s62")
        e("s_and_b32 s63, s62, 3")
        e("s_lshr_b32 s64, s62, 2")
        e("s_lshl_b32 s65, s52, 1")
        e("s_cmp_eq_u32 s64, 1"); e("s_cselect_b32 s71, 1, 0"); e("s_cmp_eq_u32 s64, 2"); e("s_cselect_b32 s71, 32, s71")
        e("s_cmp_eq_u32 s64, 3"); e("s_cselect_b32 s71, 33, s71")
        e("s_add_u32 s65, s65, s71"); e(f"s_add_u32 s65, s65, {P_W3}")
        e("s_sub_u32 s72, s62, 12"); e("s_lshl_b32 s72, s72, 1")
        e("s_cmp_ge_u32 s62, 12"); e("s_cselect_b32 s63, s72, s63")
        e("s_lshl_b32 s61, s61, 2"); e("s_add_u32 s61, s61, s63"); e(f"s_mul_i32 s61, s61, {NPOS}"); e("s_add_u32 s61, s61, s65")
        e(f"s_lshl_b32 s{56+b}, s61, 10")
        e(f"s_add_u32 s72, s{56+b}, {NPOS*1024}"); e("s_cmp_ge_u32 s62, 12"); e(f"s_cselect_b32 s{76+b}, s72, s{56+b}")
    e("s_branch P_go")
    k.lab("P_s5")
    e("s_mov_b32 s48, s18"); e("s_mov_b32 s49, s19"); e("s_mov_b32 s50, 1024"); e(f"s_mov_b32 s51, {1792*1024}")
    e("s_sub_u32 s47, s23, 1216")
    e("s_lshr_b32 s52, s47, 3"); e("s_and_b32 s53, s47, 7")
    e("s_mul_i32 s61, s52, 9363"); e("s_lshr_b32 s61, s61, 16")
    e("s_mul_i32 s62, s61, 7"); e("s_sub_u32 s62, s52, s62")
    e("s_sub_u32 s63, s61, s53"); e("s_and_b32 s63, s63, 7")
    if EARLY:
        e("s_lshl_b32 s64, s63, 2"); e("s_add_u32 s64, s64, s62")
        e("s_mul_i32 s65, s63, 3"); e("s_add_u32 s65, s65, s62"); e("s_add_u32 s65, s65, 28")
        e("s_cmp_lt_u32 s62, 4"); e("s_cselect_b32 s64, s64, s65")
    else:
        e("s_mul_i32 s63, s63, 7"); e("s_add_u32 s64, s63, s62")
    e("s_and_b32 s65, s64, 1"); e("s_lshr_b32 s64, s64, 1"); e("s_lshl_b32 s64, s64, 1"); e(f"s_add_u32 s64, s64, {P_W4}")
    e("s_lshl_b32 s61, s53, 2")
    for b in range(4):
        e(f"s_cmp_eq_u32 s65, {b >> 1}"); e(f"s_cselect_b32 s60, {b}, {b ^ 2}"); e("s_cselect_b32 s72, 0, 1")
        e("s_add_u32 s60, s60, s61"); e(f"s_mul_i32 s60, s60, {NPOS}"); e("s_add_u32 s60, s60, s64"); e("s_add_u32 s60, s60, s72"); e(f"s_lshl_b32 s{56+b}, s60, 10")
    for b in range(4): e(f"s_mov_b32 s{76+b}, s{56+b}")
    k.lab("P_go")
    e("s_mov_b32 s66, s50")
    e("s_mov_b32 s50, s51"); e("s_mov_b32 s51, 0x00020000")
    e("v_mul_lo_u32 v14, v4, s66"); e("v_add_u32 v14, v14, v7")
    e("s_mul_i32 s67, s52, s66"); e("s_lshl_b32 s67, s67, 5"); e("s_lshl_b32 s68, s53, 7"); e("s_add_u32 s67, s67, s68")
    e("s_lshl_b32 s68, s66, 3")
    e("s_lshl_b32 s69, s22, 12")
    e("s_mov_b32 m0, s69")
    for i in range(4):
        e(f"buffer_load_dwordx4 v14, s[48:51], s67 offen lds")
        if i < 3:
            e("s_add_u32 s67, s67, s68"); e("s_add_u32 m0, m0, 1024")
    e("v_lshrrev_b32 v15, 4, v1"); e("v_lshlrev_b32 v15, 3, v15")
    e("v_lshrrev_b32 v16, 2, v1"); e("v_and_b32 v16, 3, v16"); e("v_add_u32 v15, v15, v16"); e("v_lshlrev_b32 v15, 7, v15")
    e("v_and_b32 v16, 3, v1"); e("v_lshlrev_b32 v16, 3, v16"); e("v_add_u32 v15, v15, v16"); e("v_add_u32 v15, s69, v15")
    e("s_waitcnt vmcnt(0)")
    e("buffer_store_dwordx4 v[8:11], v12, s[24:27], s46 offen" + (" sc1" if SC1 else ""))
    for b in range(4):
        e(f"ds_read_b64_tr_b16 v[{20+4*b}:{21+4*b}], v15 offset:{b*32}")
        e(f"ds_read_b64_tr_b16 v[{22+4*b}:{23+4*b}], v15 offset:{b*32+512}")
    e("s_waitcnt lgkmcnt(0)")
    for b in range(4):
        e(f"s_add_u32 s{56+b}, s{56+b}, {WSH}")
        e(f"buffer_store_dwordx4 v[{20+4*b}:{23+4*b}], v3, s[24:27], s{56+b} offen" + (" sc1" if SC1 else ""))
        lab2 = k.newlab("P_d2")
        e(f"s_add_u32 s{76+b}, s{76+b}, {WSH}"); e(f"s_cmp_eq_u32 s{76+b}, s{56+b}"); e(f"s_cbranch_scc1 {lab2}")
        e(f"buffer_store_dwordx4 v[{20+4*b}:{23+4*b}], v3, s[24:27], s{76+b} offen" + (" sc1" if SC1 else ""))
        k.lab(lab2)
    e("s_branch P_fill")
    k.lab("P_now")
    e("s_waitcnt vmcnt(0)")
    e("buffer_store_dwordx4 v[8:11], v12, s[24:27], s46 offen" + (" sc1" if SC1 else ""))
    k.lab("P_fill")
    nfill = (SENT_END - KV1) // 1024
    for r in range(2):
        if r == 1:
            e(f"s_cmp_ge_u32 s23, {nfill - 2048}"); e("s_cbranch_scc1 P_nof")
        e(f"s_add_u32 s70, s23, {2048*r}"); e("s_lshl_b32 s70, s70, 10"); e(f"s_add_u32 s70, s70, {KV1}")
        e("v_mov_b32 v40, -1")
        for layer in range(2):
            for half in range(2):
                a1 = HALO + (layer*34 + 1)*2048 + half*1024
                a2 = HALO + (layer*34 + 32)*2048 + half*1024
                l1 = k.newlab("P_h"); l2 = k.newlab("P_h")
                e(f"s_cmp_lg_u32 s70, {a1}"); e(f"s_cbranch_scc1 {l1}")
                e("v_cmp_gt_u32 vcc, 32, v1"); e("v_cndmask_b32 v40, v40, 0, vcc" if False else "v_cndmask_b32_e64 v40, v40, 0, vcc")
                k.lab(l1)
                e(f"s_cmp_lg_u32 s70, {a2}"); e(f"s_cbranch_scc1 {l2}")
                e("v_cmp_le_u32 vcc, 32, v1"); e("v_cndmask_b32_e64 v40, v40, 0, vcc")
                k.lab(l2)
        e("v_mov_b32 v41, v40"); e("v_mov_b32 v42, v40"); e("v_mov_b32 v43, v40")
        e("buffer_store_dwordx4 v[40:43], v3, s[24:27], s70 offen" + (" sc1" if SC1 else ""))
        e("s_nop 1")
    k.lab("P_nof")
    if WARM or SENT_TB:
        e("s_and_b32 s70, s2, 7"); e("s_lshr_b32 s71, s2, 3"); e("s_lshl_b32 s71, s71, 2"); e("s_add_u32 s71, s71, s22")
        e("v_mov_b32 v44, -1"); e("v_mov_b32 v45, -1"); e("v_mov_b32 v46, -1"); e("v_mov_b32 v47, -1")
        NR = 352 if WARM else 128
        for r in range((4*NR + 255)//256):
            lab = k.newlab("P_w")
            e(f"s_add_u32 s72, s71, {256*r}")
            e(f"s_cmp_ge_u32 s72, {4*NR}"); e(f"s_cbranch_scc1 {lab}")
            if WARM:
                e("s_mul_i32 s73, s72, 47663"); e("s_lshr_b32 s73, s73, 24")
            else:
                e("s_lshr_b32 s73, s72, 7")
            e(f"s_mul_i32 s74, s73, {NR}"); e("s_sub_u32 s74, s72, s74")
            e("s_lshl_b32 s75, s70, 2"); e("s_add_u32 s75, s75, s73"); e("s_lshl_b32 s75, s75, 21"); e(f"s_add_u32 s75, s75, {CLB}")
            e("s_lshl_b32 s76, s74, 10")
            e(f"s_add_u32 s77, s76, {TBS[1]}"); e(f"s_add_u32 s78, s76, {H2F_OFF - 128*1024}")
            e("s_cmp_lt_u32 s74, 128"); e("s_cselect_b32 s77, s77, s78"); e("s_add_u32 s75, s75, s77")
            e("buffer_store_dwordx4 v[44:47], v3, s[24:27], s75 offen" + (" sc1" if SC1 else ""))
            k.lab(lab)
    e(f"s_cmp_ge_u32 s23, {ZERO_END//1024}"); e("s_cbranch_scc1 P_done")
    e("s_lshl_b32 s70, s23, 10")
    e("v_mov_b32 v44, 0"); e("v_mov_b32 v45, 0"); e("v_mov_b32 v46, 0"); e("v_mov_b32 v47, 0")
    e("buffer_store_dwordx4 v[44:47], v3, s[24:27], s70 offen" + (" sc1" if SC1 else ""))
    k.lab("P_done")
    if RT:
        e(f"s_cmp_ge_u32 s2, {PREP_WGS}"); e("s_cbranch_scc1 P_done2")
        e("s_waitcnt vmcnt(0)")
        e("s_memrealtime s[92:93]"); e("s_waitcnt lgkmcnt(0)")
        e("v_mov_b32 v50, s90"); e("v_mov_b32 v51, s92"); e("s_lshl_b32 s70, s23, 3"); e("s_add_u32 s70, s70, 0xD00000")
        e("s_mov_b64 exec, 1"); e("buffer_store_dwordx2 v[50:51], off, s[24:27], s70"); e("s_waitcnt vmcnt(0)")
        k.lab("P_done2")
    e("s_endpgm")
    return k.L
```

```python
import sys, importlib, os
from asmlib import *
from layout import *
import prep

HEAD = """; Kernarg layout (88 bytes): A_x 0, A_wqkv 8, A_wo 16, B_x 24, B_w1 32, B_w2 40, B_w3 48, B_w4 56, out 64, debug 72, ws 80
"""

def kernel_text(name, lines, vgpr, accum, sgpr=102):
    body, nn = pad_hazards(lines)
    s = f".globl {name}\n.p2align 8\n.type {name},@function\n{name}:\n" + "\n".join(body) + "\n"
    d = f""".amdhsa_kernel {name}
  .amdhsa_next_free_vgpr {vgpr}
  .amdhsa_next_free_sgpr {sgpr}
  .amdhsa_accum_offset {accum}
  .amdhsa_group_segment_fixed_size 0
  .amdhsa_kernarg_size 88
  .amdhsa_user_sgpr_count 2
  .amdhsa_user_sgpr_kernarg_segment_ptr 1
  .amdhsa_system_sgpr_workgroup_id_x 1
  .amdhsa_float_denorm_mode_32 3
  .amdhsa_float_denorm_mode_16_64 3
.end_amdhsa_kernel
"""
    return s, d, nn, len(body)

def build(kernels):
    hdr = HEAD
    for (name, lines, vgpr, accum, grid, block, lds) in kernels:
        hdr += f"; @launch kernel={name} grid=({grid},1,1) block=({block},1,1) lds={lds}\n"
    txt = '.amdgcn_target "amdgcn-amd-amdhsa--gfx950"\n.text\n'
    desc = '.section .rodata,"a"\n'
    for (name, lines, vgpr, accum, grid, block, lds) in kernels:
        s, d, nn, n = kernel_text(name, lines, vgpr, accum)
        sys.stderr.write(f"{name}: {n} lines, {nn} hazard nops\n")
        txt += s
        desc += ".p2align 6\n" + d
    return hdr + txt + desc

if __name__ == "__main__":
    out = sys.argv[1] if len(sys.argv) > 1 else "k.s"
    what = sys.argv[2] if len(sys.argv) > 2 else "all"
    if what != "prep":
        import importlib as il
        mainl = il.import_module(os.environ.get('MAINMOD', 'mainl3'))
        opts = dict(a.split("=") for a in sys.argv[3:])
        codepf = int(opts.pop("codepf", 1))
        nnop = int(opts.pop("nnop", 0))
        prep.WARM = bool(int(opts.pop("warm", 1)))
        prep.RT = bool(int(opts.get("rt", 0)))
        prep.SC1 = bool(int(opts.pop("psc1", 0)))
        prep.SENT_TB = os.environ.get('MAINMOD', '') == 'mainl3'
        ml = mainl.gen_main(**opts)
        nins = sum(1 for l in ml if l.startswith("  ") and not l.strip().startswith(";"))
        prep.CODE_KB = (nins * 8 // 1024) if codepf else 0
        ks = [("prep_kernel", prep.gen_prep(), 64, 64, prep.PREP_WGS, 256, 16384)]
        ks.append(("main_kernel", ml, 512, 256, 256, 256, mainl.LDS_BYTES))
    else:
        ks = [("prep_kernel", prep.gen_prep(), 64, 64, prep.PREP_WGS, 256, 16384)]
    if what != "prep" and nnop:
        for i in range(nnop): pass
        ks_launch = ks + [("nop_kernel", ["  s_endpgm"], 8, 8, 256, 64, 0)] * nnop
        txt = build(ks + [("nop_kernel", ["  s_endpgm"], 8, 8, 256, 64, 0)])
        line = "; @launch kernel=nop_kernel grid=(256,1,1) block=(64,1,1) lds=0\n"
        txt = txt.replace(line, line * nnop)
        open(out, "w").write(txt)
    else:
        open(out, "w").write(build(ks))
```

```python
import sys, importlib, os
from asmlib import *
from layout import *
import prep

HEAD = """; Kernarg layout (88 bytes): A_x 0, A_wqkv 8, A_wo 16, B_x 24, B_w1 32, B_w2 40, B_w3 48, B_w4 56, out 64, debug 72, ws 80
"""

def kernel_text(name, lines, vgpr, accum, sgpr=102):
    body, nn = pad_hazards(lines)
    s = f".globl {name}\n.p2align 8\n.type {name},@function\n{name}:\n" + "\n".join(body) + "\n"
    d = f""".amdhsa_kernel {name}
  .amdhsa_next_free_vgpr {vgpr}
  .amdhsa_next_free_sgpr {sgpr}
  .amdhsa_accum_offset {accum}
  .amdhsa_group_segment_fixed_size 0
  .amdhsa_kernarg_size 88
  .amdhsa_user_sgpr_count 2
  .amdhsa_user_sgpr_kernarg_segment_ptr 1
  .amdhsa_system_sgpr_workgroup_id_x 1
  .amdhsa_float_denorm_mode_32 3
  .amdhsa_float_denorm_mode_16_64 3
.end_amdhsa_kernel
"""
    return s, d, nn, len(body)

def build(kernels):
    hdr = HEAD
    for (name, lines, vgpr, accum, grid, block, lds) in kernels:
        if len(kernels) == 1 and name == KNAME: hdr += f"; @launch grid=({grid},1,1) block=({block},1,1) lds={lds}\n"
        else: hdr += f"; @launch kernel={name} grid=({grid},1,1) block=({block},1,1) lds={lds}\n"
    txt = '.amdgcn_target "amdgcn-amd-amdhsa--gfx950"\n.text\n'
    desc = '.section .rodata,"a"\n'
    for (name, lines, vgpr, accum, grid, block, lds) in kernels:
        s, d, nn, n = kernel_text(name, lines, vgpr, accum)
        sys.stderr.write(f"{name}: {n} lines, {nn} hazard nops\n")
        txt += s
        desc += ".p2align 6\n" + d
    return hdr + txt + desc

if __name__ == "__main__":
    out = sys.argv[1] if len(sys.argv) > 1 else "k.s"
    what = sys.argv[2] if len(sys.argv) > 2 else "all"
    if what != "prep":
        import importlib as il
        mainl = il.import_module(os.environ.get('MAINMOD', 'mainl3'))
        opts = dict(a.split("=") for a in sys.argv[3:])
        codepf = int(opts.pop("codepf", 1))
        nnop = int(opts.pop("nnop", 0))
        prep.WARM = bool(int(opts.pop("warm", 1)))
        prep.RT = bool(int(opts.get("rt", 0)))
        prep.SC1 = bool(int(opts.pop("psc1", 0)))
        prep.SENT_TB = os.environ.get('MAINMOD', '') == 'mainl3'
        ml = mainl.gen_main(**opts)
        nins = sum(1 for l in ml if l.startswith("  ") and not l.strip().startswith(";"))
        prep.CODE_KB = (nins * 8 // 1024) if codepf else 0
        if os.environ.get('MAINMOD', '') == 'mainl6':
            ks = [(KNAME, ml, 512, 256, 256, 256, mainl.LDS_BYTES)]
        else:
            ks = [("prep_kernel", prep.gen_prep(), 64, 64, prep.PREP_WGS, 256, 16384)]
            ks.append(("main_kernel", ml, 512, 256, 256, 256, mainl.LDS_BYTES))
    else:
        ks = [("prep_kernel", prep.gen_prep(), 64, 64, prep.PREP_WGS, 256, 16384)]
    if what != "prep" and nnop:
        for i in range(nnop): pass
        ks_launch = ks + [("nop_kernel", ["  s_endpgm"], 8, 8, 256, 64, 0)] * nnop
        txt = build(ks + [("nop_kernel", ["  s_endpgm"], 8, 8, 256, 64, 0)])
        line = "; @launch kernel=nop_kernel grid=(256,1,1) block=(64,1,1) lds=0\n"
        txt = txt.replace(line, line * nnop)
        open(out, "w").write(txt)
    else:
        open(out, "w").write(build(ks))
```
